```python
import torch

def _softmax(x, axis=-1):
    return torch.softmax(x, dim=axis)
def _gelu(x):
    return torch.nn.functional.gelu(x, approximate="tanh")
def _silu(x):
    return torch.nn.functional.silu(x)
def _sigmoid(x):
    return torch.sigmoid(x)
def _layernorm(x, axis=-1, eps=1e-5):
    m = x.mean(dim=axis, keepdim=True)
    v = x.var(dim=axis, keepdim=True, unbiased=False)
    return (x - m) / torch.sqrt(v + eps)
def _scatter_add(tgt, idx, src, axis=0):
    return tgt.clone().index_add_(axis, idx, src)
def _segment_sum(src, seg, n):
    out = torch.zeros((n,) + src.shape[1:], dtype=src.dtype)
    return out.index_add_(0, seg, src)
def _pad(x, pw):
    flat = tuple(v for pair in reversed(pw) for v in pair)
    return torch.nn.functional.pad(x, flat)

kernel_name = 'standalone__dense_activation_relu__prompt'

def setup_inputs():

    _w = (lambda a: (lambda t: t.to(torch.bfloat16) if t.is_floating_point() else t)(torch.as_tensor(a)))
    B, S, D, Dff = 1, 2048, 640, 1728
    return {
        "x": _w((lambda *s: torch.randn(*s, dtype=torch.bfloat16) * 0.05)(B, S, D)),
        "w1": _w((lambda *s: torch.randn(*s, dtype=torch.bfloat16) * 0.05)(D, Dff)),
        "w2": _w((lambda *s: torch.randn(*s, dtype=torch.bfloat16) * 0.05)(Dff, D)),
    }

def reference(x, w1, w2):
    h = torch.einsum("bsd,df->bsf", x, w1)
    zero = torch.zeros_like(h)
    h = torch.maximum(h, zero)
    return torch.einsum("bsf,fd->bsd", h, w2)
```

```python
import sys
out = []
def e(s): out.append("    " + s)
def lab(s): out.append(s + ":")
def c(s): out.append("    ; " + s)

HEADER = open('standalone__dense_activation_relu__prompt.s.ref').read().split('; Override')[0]

def kernel_desc(name, vgpr, accum, sgpr=102):
    return f""".amdhsa_kernel {name}
  .amdhsa_next_free_vgpr {vgpr}
  .amdhsa_next_free_sgpr {sgpr}
  .amdhsa_accum_offset {accum}
  .amdhsa_group_segment_fixed_size 0
  .amdhsa_kernarg_size 48
  .amdhsa_user_sgpr_count 2
  .amdhsa_user_sgpr_kernarg_segment_ptr 1
  .amdhsa_system_sgpr_workgroup_id_x 1
.end_amdhsa_kernel
"""

X_BYTES = 2048*640*2
W_BYTES = 640*1728*2
H_BYTES = 2048*1728*2
O_BYTES = 2048*640*2

def srd(d, lo, nbytes):
    e(f"s_mov_b32 s{d}, s{lo}")
    e(f"s_and_b32 s{d+1}, s{lo+1}, 0xffff")
    e(f"s_mov_b32 s{d+2}, {nbytes}")
    e(f"s_mov_b32 s{d+3}, 0x00020000")

def gemm1():
    name = "g1_kernel"
    out.append(f".globl {name}\n.p2align 8\n.type {name},@function\n{name}:")
    e("s_cmp_ge_u32 s2, 256")
    e("s_cbranch_scc1 L1_done")
    e("s_load_dwordx4 s[4:7], s[0:1], 0")
    e("s_load_dwordx2 s[14:15], s[0:1], 40")
    e("v_lshrrev_b32 v1, 6, v0")
    e("v_and_b32 v2, 63, v0")
    e("s_nop 0")
    e("v_readfirstlane_b32 s30, v1")
    e("s_and_b32 s31, s2, 7")
    e("s_lshr_b32 s32, s2, 3")
    e("s_lshr_b32 s33, s32, 4")
    e("s_lshl_b32 s31, s31, 1")
    e("s_add_u32 s33, s33, s31")
    e("s_and_b32 s34, s32, 15")
    e("s_mul_i32 s35, s34, 7")
    e("s_mul_i32 s36, s34, 6")
    e("s_add_u32 s36, s36, 12")
    e("s_min_u32 s35, s35, s36")
    e("s_min_u32 s35, s35, 101")
    e("s_lshl_b32 s36, s33, 2")
    e("s_add_u32 s36, s36, s30")
    e("s_lshl_b32 s36, s36, 5")
    e("v_and_b32 v3, 15, v2")
    e("v_add_u32 v3, s36, v3")
    e("v_mul_u32_u24 v3, 1280, v3")
    e("v_lshrrev_b32 v4, 4, v2")
    e("v_lshlrev_b32 v4, 4, v4")
    e("v_add_u32 v3, v3, v4")
    e("v_add_u32 v4, 20480, v3")
    for i in range(7):
        e(f"v_add_u32 v12, {64*i}, v2")
        e("v_mul_u32_u24 v13, 4682, v12")
        e("v_lshrrev_b32 v13, 16, v13")
        e("v_mul_u32_u24 v14, 14, v13")
        e("v_sub_u32 v14, v12, v14")
        e("v_and_b32 v15, 0x13, v13")
        e("v_and_b32 v16, 4, v13")
        e("v_lshlrev_b32 v16, 1, v16")
        e("v_or_b32 v15, v15, v16")
        e("v_and_b32 v16, 8, v13")
        e("v_lshrrev_b32 v16, 1, v16")
        e("v_or_b32 v15, v15, v16")
        e("v_mul_u32_u24 v15, 3456, v15")
        e("v_lshlrev_b32 v14, 4, v14")
        e("v_add_u32 v15, v15, v14")
        e(f"v_subrev_u32 v{5+i}, {1024*(i%4)}, v15")
    e("v_lshrrev_b32 v12, 5, v2")
    e("v_lshlrev_b32 v12, 4, v12")
    e("v_lshrrev_b32 v13, 2, v2")
    e("v_and_b32 v13, 7, v13")
    e("v_add_u32 v12, v12, v13")
    e("v_mul_u32_u24 v12, 224, v12")
    e("v_and_b32 v13, 3, v2")
    e("v_lshlrev_b32 v13, 3, v13")
    e("v_add_u32 v17, v12, v13")
    e("s_lshr_b32 s37, s36, 4")
    e("s_mul_i32 s37, s37, 55296")
    e("v_lshlrev_b32 v18, 4, v2")
    e("v_add_u32 v18, s37, v18")
    e("v_add_u32 v19, 55296, v18")
    e("s_mul_i32 s38, s30, 110592")
    e("s_lshl_b32 s39, s35, 5")
    e("s_add_u32 s38, s38, s39")
    e("s_mul_i32 s39, s30, 7168")
    e("s_waitcnt lgkmcnt(0)")
    srd(16, 4, X_BYTES)
    srd(20, 6, W_BYTES)
    srd(24, 14, H_BYTES)
    ACC = 32; AF = 96
    def issue_round(r):
        e(f"s_add_u32 s40, s38, {r*4*110592}")
        e(f"s_add_u32 m0, s39, {r*4*7168}")
        e("s_nop 0")
        for i in range(7):
            if i == 4:
                e(f"s_add_u32 m0, s39, {r*4*7168+4096}")
                e("s_nop 0")
            e(f"buffer_load_dwordx4 v{5+i}, s[20:23], s40 offen offset:{1024*(i%4)} lds")
        for u in range(4):
            s = 4*r+u
            for t in range(2):
                a = (s*2+t)*4
                e(f"buffer_load_dwordx4 a[{a}:{a+3}], v{3+t}, s[16:19], 0 offen offset:{64*s}")
    for r in range(4):
        issue_round(r)
    for i in range(56):
        e(f"v_mov_b32 v{ACC+i}, 0")
    def reads(s, j):
        r, u = divmod(s, 4)
        off = u*7168 + 32*j
        f = AF + 4*j
        e(f"ds_read_b64_tr_b16 v[{f}:{f+1}], v17 offset:{off}")
        e(f"ds_read_b64_tr_b16 v[{f+2}:{f+3}], v17 offset:{off+1792}")
    def round_sync(r):
        issued = 4 if r == 0 else 5
        n = 15*(issued-1-r)
        e(f"s_waitcnt vmcnt({n})")
        e("s_barrier")
        if r == 0:
            issue_round(4)
        else:
            e("v_add_u32 v17, 28672, v17")
    round_sync(0)
    for j in range(7):
        reads(0, j)
    for s in range(20):
        for j in range(7):
            nxt_issued = j if (s+1 < 20) else 0
            after = (6-j) + nxt_issued
            e(f"s_waitcnt lgkmcnt({2*after})")
            f = AF + 4*j
            for t in range(2):
                a = (s*2+t)*4
                acc = ACC + (j*2+t)*4
                e(f"v_mfma_f32_16x16x32_bf16 v[{acc}:{acc+3}], v[{f}:{f+3}], a[{a}:{a+3}], v[{acc}:{acc+3}]")
            if s+1 < 20:
                if j == 0 and (s+1) % 4 == 0:
                    round_sync((s+1)//4)
                reads(s+1, j)
    e("s_nop 7")
    e("s_nop 7")
    for j in range(7):
        e(f"s_add_u32 s41, s35, {j}")
        e("s_lshr_b32 s42, s41, 1")
        e("s_lshl_b32 s42, s42, 10")
        e("s_and_b32 s41, s41, 1")
        e("s_lshl_b32 s41, s41, 3")
        e("s_add_u32 s42, s42, s41")
        for t in range(2):
            acc = ACC + (j*2+t)*4
            d = AF + (j*2+t)*2
            e(f"v_cvt_pk_bf16_f32 v{d}, v{acc}, v{acc+1}")
            e(f"v_cvt_pk_bf16_f32 v{d+1}, v{acc+2}, v{acc+3}")
            e(f"v_pk_max_i16 v{d}, v{d}, 0")
            e(f"v_pk_max_i16 v{d+1}, v{d+1}, 0")
            e(f"buffer_store_dwordx2 v[{d}:{d+1}], v{18+t}, s[24:27], s42 offen")
    lab("L1_done")
    e("s_endpgm")
    return kernel_desc(name, 128+160, 128)

def gemm2():
    name = "g2_kernel"
    out.append(f".globl {name}\n.p2align 8\n.type {name},@function\n{name}:")
    e("s_cmp_ge_u32 s2, 256")
    e("s_cbranch_scc1 L2_done")
    e("s_load_dwordx4 s[8:11], s[0:1], 16")
    e("s_load_dwordx2 s[14:15], s[0:1], 40")
    e("v_lshrrev_b32 v1, 6, v0")
    e("v_and_b32 v2, 63, v0")
    e("s_nop 0")
    e("v_readfirstlane_b32 s30, v1")
    e("s_and_b32 s31, s2, 7")
    e("s_lshr_b32 s32, s2, 3")
    e("s_lshr_b32 s33, s32, 3")
    e("s_lshl_b32 s31, s31, 2")
    e("s_add_u32 s33, s33, s31")
    e("s_and_b32 s34, s32, 7")
    e("v_lshlrev_b32 v3, 4, v2")
    for t in range(1, 4):
        e(f"v_add_u32 v{3+t}, {55296*t}, v3")
    for i in range(5):
        e(f"v_add_u32 v12, {64*i}, v2")
        e("v_mul_u32_u24 v13, 6554, v12")
        e("v_lshrrev_b32 v13, 16, v13")
        e("v_mul_u32_u24 v14, 10, v13")
        e("v_sub_u32 v14, v12, v14")
        e("v_mul_u32_u24 v13, 1280, v13")
        e("v_lshlrev_b32 v14, 4, v14")
        e("v_add_u32 v13, v13, v14")
        e(f"v_subrev_u32 v{7+i}, {1024*(i%4)}, v13")
    e("s_mul_i32 s39, s30, 40960")
    e("v_lshrrev_b32 v12, 2, v2")
    e("v_mul_u32_u24 v12, 160, v12")
    e("v_and_b32 v13, 3, v2")
    e("v_lshlrev_b32 v13, 3, v13")
    e("v_add_u32 v12, v12, v13")
    e("v_add_u32 v17, s39, v12")
    e("s_mul_i32 s36, s33, 216")
    e("s_add_u32 s36, s36, s30")
    e("s_lshl_b32 s36, s36, 10")
    e("s_mul_i32 s37, s30, 40960")
    e("s_mul_i32 s38, s34, 160")
    e("s_add_u32 s37, s37, s38")
    e("s_cmp_lt_u32 s30, 2")
    e("s_cselect_b32 s43, 0, 0x40000000")
    e("s_waitcnt lgkmcnt(0)")
    srd(16, 8, W_BYTES)
    srd(20, 10, O_BYTES)
    srd(24, 14, H_BYTES)
    ACC = 32; AF = 112
    NS = 14
    def issue(st):
        slot = st % 8
        e(f"s_add_u32 s40, s37, {st*4*40960}")
        e(f"s_add_u32 s41, s36, {st*4096}")
        if st == NS-1:
            e("s_add_u32 s40, s40, s43")
            e("s_add_u32 s41, s41, s43")
        e(f"s_add_u32 m0, s39, {slot*5120}")
        e("s_nop 0")
        for i in range(5):
            if i == 4:
                e(f"s_add_u32 m0, s39, {slot*5120+4096}")
                e("s_nop 0")
            e(f"buffer_load_dwordx4 v{7+i}, s[16:19], s40 offen offset:{1024*(i%4)} lds")
        for t in range(4):
            a = (st*4+t)*4
            e(f"buffer_load_dwordx4 a[{a}:{a+3}], v{3+t}, s[24:27], s41 offen")
    for st in range(7):
        issue(st)
    for i in range(80):
        e(f"v_mov_b32 v{ACC+i}, 0")
    def reads(st, j):
        f = AF + (st % 2)*20 + 4*j
        off = (st % 8)*5120 + 32*j
        e(f"ds_read_b64_tr_b16 v[{f}:{f+1}], v17 offset:{off}")
        e(f"ds_read_b64_tr_b16 v[{f+2}:{f+3}], v17 offset:{off+2560}")
    e(f"s_waitcnt vmcnt({9*6})")
    for j in range(5):
        reads(0, j)
    for st in range(NS):
        if st+1 < NS:
            n = 9*(min(st+6, NS-1) - (st+1))
            e(f"s_waitcnt vmcnt({n})")
        for j in range(5):
            if st+1 < NS:
                reads(st+1, j)
                after = (4-j) + (j+1)
            else:
                after = 4-j
            e(f"s_waitcnt lgkmcnt({2*after})")
            f = AF + (st % 2)*20 + 4*j
            for t in range(4):
                a = (st*4+t)*4
                acc = ACC + (j*4+t)*4
                e(f"v_mfma_f32_16x16x32_bf16 v[{acc}:{acc+3}], v[{f}:{f+3}], a[{a}:{a+3}], v[{acc}:{acc+3}]")
            if j == 0 and st+7 < NS:
                issue(st+7)
    e("s_nop 7")
    e("s_nop 7")
    e("v_lshlrev_b32 v12, 4, v2")
    e("v_add_u32 v13, s39, v12")
    for tl in range(20):
        acc = ACC + tl*4
        if tl == 12:
            e("s_waitcnt lgkmcnt(4)")
        e(f"ds_write_b128 v13, v[{acc}:{acc+3}] offset:{tl*1024}")
    e("s_waitcnt lgkmcnt(0)")
    e("s_barrier")
    e("s_lshl_b32 s40, s30, 10")
    e("v_add_u32 v13, s40, v12")
    e("v_add_u32 v14, 81920, v13")
    def rd(j):
        for ww in range(4):
            d = ACC + (j*4+ww)*4
            base = "v13" if ww < 2 else "v14"
            e(f"ds_read_b128 v[{d}:{d+3}], {base} offset:{(ww%2)*40960 + j*4096}")
    for j in range(3):
        rd(j)
    e("s_lshl_b32 s40, s33, 2")
    e("s_add_u32 s40, s40, s30")
    e("s_lshl_b32 s40, s40, 4")
    e("v_and_b32 v15, 15, v2")
    e("v_add_u32 v15, s40, v15")
    e("v_mul_u32_u24 v15, 1280, v15")
    e("v_lshrrev_b32 v16, 4, v2")
    e("v_lshlrev_b32 v16, 3, v16")
    e("v_add_u32 v15, v15, v16")
    e("s_mul_i32 s41, s34, 160")
    for j in range(5):
        e(f"s_waitcnt lgkmcnt({4*min(2, 4-j)})")
        if j+3 < 5:
            rd(j+3)
        b = ACC + j*16
        for r in range(4):
            e(f"v_add_f32 v{b+r}, v{b+r}, v{b+4+r}")
            e(f"v_add_f32 v{b+8+r}, v{b+8+r}, v{b+12+r}")
        for r in range(4):
            e(f"v_add_f32 v{b+r}, v{b+r}, v{b+8+r}")
        e(f"v_cvt_pk_bf16_f32 v{AF+2*j}, v{b}, v{b+1}")
        e(f"v_cvt_pk_bf16_f32 v{AF+2*j+1}, v{b+2}, v{b+3}")
        e(f"buffer_store_dwordx2 v[{AF+2*j}:{AF+2*j+1}], v15, s[20:23], s41 offen offset:{32*j}")
    lab("L2_done")
    e("s_endpgm")
    return kernel_desc(name, 160+224, 160)

d1 = gemm1()
d2 = gemm2()
txt = HEADER + "; @launch kernel=g1_kernel grid=(256,1,1) block=(256,1,1) lds=143360\n" \
    + "; @launch kernel=g2_kernel grid=(256,1,1) block=(256,1,1) lds=163840\n" \
    + '.amdgcn_target "amdgcn-amd-amdhsa--gfx950"\n.text\n' + "\n".join(out) + '\n.section .rodata,"a"\n.p2align 6\n' + d1 + ".p2align 6\n" + d2
open(sys.argv[1], "w").write(txt)
```

```python
import sys
out = []
def e(s): out.append("    " + s)
def lab(s): out.append(s + ":")

HEADER = open('standalone__dense_activation_relu__prompt.s.ref').read().split('; Override')[0]
STAMP = len(sys.argv) > 2 and sys.argv[2] == "stamp"

def kernel_desc(name, vgpr, accum, sgpr=102):
    return f""".amdhsa_kernel {name}
  .amdhsa_next_free_vgpr {vgpr}
  .amdhsa_next_free_sgpr {sgpr}
  .amdhsa_accum_offset {accum}
  .amdhsa_group_segment_fixed_size 0
  .amdhsa_kernarg_size 48
  .amdhsa_user_sgpr_count 2
  .amdhsa_user_sgpr_kernarg_segment_ptr 1
  .amdhsa_system_sgpr_workgroup_id_x 1
.end_amdhsa_kernel
"""
nst = [0]
def stamp():
    if not STAMP: return
    i = nst[0]; nst[0] += 1
    e("s_memrealtime s[60:61]")
    e("s_memtime s[62:63]")
    e("s_waitcnt lgkmcnt(0)")
    e(f"s_mov_b32 s{64+2*i}, s60")
    e(f"s_mov_b32 s{65+2*i}, s62")
def stamp_flush(kidx, n=None):
    if not STAMP: return
    n = nst[0] if n is None else n
    e("s_mov_b32 s26, 0x10000000")
    e(f"s_add_u32 s60, s2, {kidx*256}")
    e("s_lshl_b32 s60, s60, 2")
    e("s_add_u32 s60, s60, s30")
    e("s_lshl_b32 s60, s60, 7")
    e(f"s_add_u32 s60, s60, {(256<<20) - (4<<20)}")
    e("v_mov_b32 v21, 0")
    for i in range(2*n):
        e(f"v_mov_b32 v20, s{64+i}")
        e(f"buffer_store_dword v20, v21, s[24:27], s60 offen offset:{4*i}")
        e("s_nop 1")

X_BYTES = 2048*640*2
W_BYTES = 640*1728*2
H_BYTES = 2048*1728*2
O_BYTES = 2048*640*2
W2P = 8 << 20
WS_USED = W2P + W_BYTES
OOB = 0x7ff00000

def srd(d, lo, nbytes):
    e(f"s_mov_b32 s{d}, s{lo}")
    e(f"s_and_b32 s{d+1}, s{lo+1}, 0xffff")
    e(f"s_mov_b32 s{d+2}, {nbytes}")
    e(f"s_mov_b32 s{d+3}, 0x00020000")

def gemm1():
    name = "g1_kernel"
    out.append(f".globl {name}\n.p2align 8\n.type {name},@function\n{name}:")
    e("s_cmp_ge_u32 s2, 256")
    e("s_cbranch_scc1 L1_done")
    e("s_load_dwordx4 s[4:7], s[0:1], 0")
    e("s_load_dwordx2 s[8:9], s[0:1], 16")
    e("s_load_dwordx2 s[14:15], s[0:1], 40")
    e("v_lshrrev_b32 v1, 6, v0")
    e("v_and_b32 v2, 63, v0")
    e("s_nop 0")
    e("v_readfirstlane_b32 s30, v1")
    e("s_and_b32 s31, s2, 7")
    e("s_lshr_b32 s32, s2, 3")
    e("s_cmp_ge_u32 s32, 28")
    e("s_cbranch_scc1 L1_pack")
    e("s_cmp_ge_u32 s32, 14")
    e("s_cselect_b32 s33, 1, 0")
    e("s_cselect_b32 s34, 14, 0")
    e("s_sub_u32 s34, s32, s34")
    e("s_lshl_b32 s31, s31, 1")
    e("s_add_u32 s33, s33, s31")
    e("s_lshl_b32 s35, s34, 7")
    e("s_min_u32 s35, s35, 1600")
    e("v_lshrrev_b32 v12, 3, v2")
    e("v_mul_u32_u24 v12, 1280, v12")
    e("v_lshrrev_b32 v13, 4, v2")
    e("v_and_b32 v14, 7, v2")
    e("v_xor_b32 v14, v14, v13")
    for i in range(4):
        e(f"v_xor_b32 v15, {4*(i&1)}, v14")
        e("v_lshlrev_b32 v15, 4, v15")
        e("v_add_u32 v15, v15, v12")
        e(f"v_add_u32 v{3+i}, {i*(10240-1024)}, v15")
    e("v_mul_u32_u24 v12, 3456, v13")
    e("v_and_b32 v14, 15, v2")
    e("v_lshrrev_b32 v14, 1, v14")
    e("v_xor_b32 v14, v14, v13")
    e("v_and_b32 v16, 1, v2")
    for i in range(4):
        e(f"v_xor_b32 v15, {4*(i>>1)}, v14")
        e("v_lshlrev_b32 v15, 1, v15")
        e("v_or_b32 v15, v15, v16")
        e("v_lshlrev_b32 v15, 4, v15")
        e("v_add_u32 v15, v15, v12")
        e(f"v_add_u32 v{7+i}, {i*(13824-1024)}, v15")
    e("s_lshr_b32 s36, s30, 1")
    e("s_and_b32 s37, s30, 1")
    e("v_and_b32 v12, 15, v2")
    e("v_lshrrev_b32 v14, 1, v12")
    e("v_xor_b32 v14, v14, v13")
    e("v_lshlrev_b32 v14, 4, v14")
    e("v_lshlrev_b32 v12, 7, v12")
    e("v_add_u32 v12, v12, v14")
    e("s_lshl_b32 s38, s36, 13")
    e("v_add_u32 v22, s38, v12")
    e("v_xor_b32 v23, 64, v22")
    e("v_bfe_u32 v12, v2, 2, 2")
    e("v_lshlrev_b32 v14, 3, v13")
    e("v_add_u32 v14, v14, v12")
    e("v_lshlrev_b32 v14, 8, v14")
    e("v_and_b32 v15, 1, v13")
    e("v_lshlrev_b32 v15, 2, v15")
    e("v_or_b32 v15, v15, v12")
    e("v_and_b32 v16, 3, v2")
    e("v_lshlrev_b32 v16, 3, v16")
    e("v_add_u32 v14, v14, v16")
    e("v_add_u32 v14, 16384, v14")
    e("s_lshl_b32 s38, s37, 2")
    for nt in range(4):
        e(f"s_add_u32 s39, s38, {nt}")
        e("v_xor_b32 v16, s39, v15")
        e("v_lshlrev_b32 v16, 5, v16")
        e(f"v_add_u32 v{24+nt}, v14, v16")
    e("s_lshl_b32 s38, s33, 3")
    e("s_lshl_b32 s39, s36, 2")
    e("s_add_u32 s38, s38, s39")
    e("s_mul_i32 s38, s38, 55296")
    e("s_lshr_b32 s39, s35, 5")
    e("s_lshl_b32 s40, s37, 1")
    e("s_add_u32 s39, s39, s40")
    e("s_lshl_b32 s39, s39, 10")
    e("s_add_u32 s38, s38, s39")
    e("v_lshlrev_b32 v18, 4, v2")
    e("v_add_u32 v18, s38, v18")
    e("s_lshl_b32 s40, s33, 2")
    e("s_add_u32 s40, s40, s30")
    e("s_mul_i32 s40, s40, 40960")
    e("s_mul_i32 s41, s30, 55296")
    e("s_lshl_b32 s42, s35, 1")
    e("s_add_u32 s41, s41, s42")
    e("s_lshl_b32 s42, s30, 12")
    e("s_mov_b32 s43, 0")
    e("s_waitcnt lgkmcnt(0)")
    srd(16, 4, X_BYTES)
    srd(20, 6, W_BYTES)
    srd(24, 14, WS_USED)
    stamp()
    def issue_stage():
        e("s_cmp_lt_u32 s43, 10")
        e(f"s_cselect_b32 s44, s40, {OOB}")
        e(f"s_cselect_b32 s45, s41, {OOB}")
        e("s_mov_b32 m0, s42")
        e("s_add_u32 s40, s40, 128")
        for i in range(4):
            e(f"buffer_load_dwordx4 v{3+i}, s[16:19], s44 offen offset:{1024*i} lds")
        e("s_add_u32 m0, s42, 16384")
        e("s_add_u32 s41, s41, 221184")
        for i in range(4):
            e(f"buffer_load_dwordx4 v{7+i}, s[20:23], s45 offen offset:{1024*i} lds")
        e("s_add_u32 s43, s43, 1")
        e("s_add_u32 s42, s42, 32768")
        e("s_cmp_ge_u32 s42, 163840")
        e("s_cselect_b32 s46, 163840, 0")
        e("s_sub_u32 s42, s42, s46")
    lab("L1_pro")
    issue_stage()
    e("s_cmp_lt_u32 s43, 5")
    e("s_cbranch_scc1 L1_pro")
    stamp()
    ACC = 32; FR = 96
    for i in range(64):
        e(f"v_mov_b32 v{ACC+i}, 0")
    RB = 160
    def set_bases():
        for i in range(6):
            e(f"v_add_u32 v{RB+i}, s47, v{22+i}")
    def read_list(u):
        L = []
        f = FR + 32*u
        for t in range(4):
            L.append(f"ds_read_b64_tr_b16 v[{f+16+4*t}:{f+16+4*t+1}], v{RB+2+t} offset:{8192*u}")
            L.append(f"ds_read_b64_tr_b16 v[{f+16+4*t+2}:{f+16+4*t+3}], v{RB+2+t} offset:{8192*u+1024}")
            L.append(f"ds_read_b128 v[{f+4*t}:{f+4*t+3}], v{RB+u} offset:{2048*t}")
        return L
    def mfmas(u, reads):
        f = FR + 32*u
        k = 0
        for nt in range(4):
            for mt in range(4):
                acc = ACC + (nt*4+mt)*4
                e(f"v_mfma_f32_16x16x32_bf16 v[{acc}:{acc+3}], v[{f+16+4*nt}:{f+16+4*nt+3}], v[{f+4*mt}:{f+4*mt+3}], v[{acc}:{acc+3}]")
                if k < len(reads):
                    e(reads[k]); k += 1
    e("s_mov_b32 s47, 0")
    e("s_mov_b32 s48, 0")
    set_bases()
    e("s_waitcnt vmcnt(32)")
    e("s_barrier")
    for r in read_list(0):
        e(r)
    lab("L1_loop")
    e("s_waitcnt lgkmcnt(0)")
    mfmas(0, read_list(1))
    e("s_add_u32 s47, s47, 32768")
    e("s_cmp_ge_u32 s47, 163840")
    e("s_cselect_b32 s47, 0, s47")
    e("s_waitcnt vmcnt(24) lgkmcnt(0)")
    e("s_barrier")
    set_bases()
    issue_stage()
    mfmas(1, read_list(0))
    e("s_add_u32 s48, s48, 1")
    e("s_cmp_lt_u32 s48, 10")
    e("s_cbranch_scc1 L1_loop")
    stamp()
    e("s_nop 7")
    e("s_nop 7")
    for p in range(2):
        for mt in range(4):
            d = FR + (p*4+mt)*4
            for hh in range(2):
                acc = ACC + ((2*p+hh)*4+mt)*4
                e(f"v_cvt_pk_bf16_f32 v{d+2*hh}, v{acc}, v{acc+1}")
                e(f"v_cvt_pk_bf16_f32 v{d+2*hh+1}, v{acc+2}, v{acc+3}")
            for q in range(4):
                e(f"v_pk_max_i16 v{d+q}, v{d+q}, 0")
            e(f"s_mov_b32 s44, {mt*55296}")
            e(f"buffer_store_dwordx4 v[{d}:{d+3}], v18, s[24:27], s44 offen offset:{1024*p}")
    stamp()
    e("s_waitcnt vmcnt(0) lgkmcnt(0)")
    stamp()
    stamp_flush(0)
    e("s_endpgm")
    lab("L1_pack")
    e("s_sub_u32 s32, s32, 28")
    e("s_lshl_b32 s32, s32, 3")
    e("s_add_u32 s32, s32, s31")
    e("s_lshl_b32 s32, s32, 2")
    e("s_add_u32 s32, s32, s30")
    e("s_cmp_ge_u32 s32, 108")
    e("s_cbranch_scc1 L1_done")
    e("s_lshr_b32 s33, s32, 1")
    e("s_and_b32 s34, s32, 1")
    e("v_lshrrev_b32 v12, 3, v2")
    e("v_mul_u32_u24 v12, 1280, v12")
    e("v_lshrrev_b32 v13, 4, v2")
    e("v_bfe_u32 v14, v2, 1, 2")
    e("v_xor_b32 v14, v14, v13")
    e("v_lshlrev_b32 v14, 1, v14")
    e("v_and_b32 v15, 1, v2")
    e("v_or_b32 v14, v14, v15")
    e("v_lshlrev_b32 v14, 4, v14")
    e("v_add_u32 v3, v12, v14")
    e("s_mul_i32 s39, s30, 20480")
    e("v_lshrrev_b32 v12, 2, v2")
    e("v_lshlrev_b32 v12, 7, v12")
    e("v_and_b32 v14, 3, v2")
    e("v_lshlrev_b32 v14, 3, v14")
    e("v_add_u32 v12, v12, v14")
    e("v_add_u32 v12, s39, v12")
    e("v_bfe_u32 v13, v2, 3, 2")
    for u in range(4):
        e(f"v_xor_b32 v14, {u}, v13")
        e("v_lshlrev_b32 v14, 5, v14")
        e(f"v_add_u32 v{4+u}, v12, v14")
    e("v_lshlrev_b32 v8, 4, v2")
    e("s_mul_i32 s40, s33, 40960")
    e("s_mul_i32 s41, s34, 640")
    e("s_add_u32 s40, s40, s41")
    e("s_mul_i32 s42, s33, 5120")
    e("s_mul_i32 s41, s34, 1105920")
    e("s_add_u32 s42, s42, s41")
    e(f"s_add_u32 s42, s42, {W2P}")
    e("s_waitcnt lgkmcnt(0)")
    srd(16, 8, W_BYTES)
    srd(24, 14, WS_USED)
    for c in range(5):
        e(f"s_add_u32 m0, s39, {c*4096}")
        for rb in range(4):
            e(f"s_add_u32 s44, s40, {c*128 + rb*(10240-1024)}")
            e(f"buffer_load_dwordx4 v3, s[16:19], s44 offen offset:{1024*rb} lds")
    for c in range(5):
        e(f"s_waitcnt vmcnt({16-4*c + 4*c})" if False else f"s_waitcnt vmcnt({(16-4*c) + 4*c})")
        for u in range(4):
            d = 32 + (c*4+u)*4
            e(f"ds_read_b64_tr_b16 v[{d}:{d+1}], v{4+u} offset:{c*4096}")
            e(f"ds_read_b64_tr_b16 v[{d+2}:{d+3}], v{4+u} offset:{c*4096+2048}")
        e("s_waitcnt lgkmcnt(0)")
        for u in range(4):
            jj = c*4+u
            d = 32 + jj*4
            e(f"s_add_u32 s44, s42, {(jj//5)*276480 + (jj%5)*1024}")
            e(f"buffer_store_dwordx4 v[{d}:{d+3}], v8, s[24:27], s44 offen")
    lab("L1_done")
    e("s_endpgm")
    nst[0] = 0
    return kernel_desc(name, 168, 168)

def gemm2():
    name = "g2_kernel"
    out.append(f".globl {name}\n.p2align 8\n.type {name},@function\n{name}:")
    e("s_cmp_ge_u32 s2, 256")
    e("s_cbranch_scc1 L2_done")
    e("s_load_dwordx2 s[10:11], s[0:1], 24")
    e("s_load_dwordx2 s[14:15], s[0:1], 40")
    e("v_lshrrev_b32 v1, 6, v0")
    e("v_and_b32 v2, 63, v0")
    e("s_nop 0")
    e("v_readfirstlane_b32 s30, v1")
    e("s_and_b32 s31, s2, 7")
    e("s_lshr_b32 s32, s2, 3")
    e("s_lshr_b32 s33, s32, 3")
    e("s_lshl_b32 s31, s31, 2")
    e("s_add_u32 s33, s33, s31")
    e("s_and_b32 s34, s32, 7")
    e("v_lshlrev_b32 v3, 4, v2")
    for t in range(1, 4):
        e(f"v_add_u32 v{3+t}, {55296*t}, v3")
    e("v_add_u32 v7, 4096, v3")
    e("s_mul_i32 s39, s30, 20480")
    e("s_mul_i32 s36, s33, 216")
    e("s_add_u32 s36, s36, s30")
    e("s_lshl_b32 s36, s36, 10")
    e("s_mul_i32 s37, s34, 54")
    e("s_add_u32 s37, s37, s30")
    e("s_mul_i32 s37, s37, 5120")
    e(f"s_add_u32 s37, s37, {W2P}")
    e("s_cmp_lt_u32 s30, 2")
    e("s_cselect_b32 s43, 0, 0x40000000")
    e("s_waitcnt lgkmcnt(0)")
    srd(20, 10, O_BYTES)
    srd(24, 14, WS_USED)
    ACC = 32; NS = 14; D = 7
    def issue(st):
        a0 = (st % D)*36
        e(f"s_add_u32 s40, s37, {st*4*5120}")
        e(f"s_add_u32 s41, s36, {st*4096}")
        if st == NS-1:
            e("s_add_u32 s40, s40, s43")
            e("s_add_u32 s41, s41, s43")
        L = []
        for j in range(5):
            a = a0 + 4*j
            if j < 4:
                L.append(f"buffer_load_dwordx4 a[{a}:{a+3}], v3, s[24:27], s40 offen offset:{1024*j}")
            else:
                L.append(f"buffer_load_dwordx4 a[{a}:{a+3}], v7, s[24:27], s40 offen")
        for t in range(4):
            a = a0 + 20 + 4*t
            L.append(f"buffer_load_dwordx4 a[{a}:{a+3}], v{3+t}, s[24:27], s41 offen")
        return L
    stamp()
    for st in range(D):
        for l in issue(st): e(l)
    stamp()
    for i in range(80):
        e(f"v_mov_b32 v{ACC+i}, 0")
    for st in range(NS):
        n = 9*(min(st+D-1, NS-1) - st)
        e(f"s_waitcnt vmcnt({n})")
        if st % 2 == 0: stamp()
        a0 = (st % D)*36
        for j in range(5):
            for t in range(4):
                acc = ACC + (j*4+t)*4
                e(f"v_mfma_f32_16x16x32_bf16 v[{acc}:{acc+3}], a[{a0+4*j}:{a0+4*j+3}], a[{a0+20+4*t}:{a0+20+4*t+3}], v[{acc}:{acc+3}]")
        if st+D < NS:
            for l in issue(st+D): e(l)
    e("s_nop 7")
    e("s_nop 7")
    e("v_add_u32 v13, s39, v3")
    for tl in range(20):
        acc = ACC + tl*4
        if tl == 12:
            e("s_waitcnt lgkmcnt(4)")
        e(f"ds_write_b128 v13, v[{acc}:{acc+3}] offset:{tl*1024}")
    e("s_waitcnt lgkmcnt(0)")
    e("s_barrier")
    e("s_lshl_b32 s40, s30, 10")
    e("v_add_u32 v13, s40, v3")
    def rd(j):
        for ww in range(4):
            d = ACC + (j*4+ww)*4
            e(f"ds_read_b128 v[{d}:{d+3}], v13 offset:{ww*20480 + j*4096 if ww*20480 + j*4096 < 65536 else 0}") if ww < 3 else e(f"ds_read_b128 v[{d}:{d+3}], v14 offset:{j*4096}")
    e("v_add_u32 v14, 61440, v13")
    for j in range(3):
        rd(j)
    e("s_lshl_b32 s40, s33, 2")
    e("s_add_u32 s40, s40, s30")
    e("s_lshl_b32 s40, s40, 4")
    e("v_and_b32 v15, 15, v2")
    e("v_add_u32 v15, s40, v15")
    e("v_mul_u32_u24 v15, 1280, v15")
    e("v_lshrrev_b32 v16, 4, v2")
    e("v_lshlrev_b32 v16, 3, v16")
    e("v_add_u32 v15, v15, v16")
    e("s_mul_i32 s41, s34, 160")
    AF = 112
    for j in range(5):
        e(f"s_waitcnt lgkmcnt({4*min(2, 4-j)})")
        if j+3 < 5:
            rd(j+3)
        b = ACC + j*16
        for r in range(4):
            e(f"v_add_f32 v{b+r}, v{b+r}, v{b+4+r}")
            e(f"v_add_f32 v{b+8+r}, v{b+8+r}, v{b+12+r}")
        for r in range(4):
            e(f"v_add_f32 v{b+r}, v{b+r}, v{b+8+r}")
        e(f"v_cvt_pk_bf16_f32 v{AF+2*j}, v{b}, v{b+1}")
        e(f"v_cvt_pk_bf16_f32 v{AF+2*j+1}, v{b+2}, v{b+3}")
        e(f"buffer_store_dwordx2 v[{AF+2*j}:{AF+2*j+1}], v15, s[20:23], s41 offen offset:{32*j}")
    stamp()
    e("s_waitcnt vmcnt(0)")
    stamp()
    stamp_flush(1)
    lab("L2_done")
    e("s_endpgm")
    return kernel_desc(name, 128+252, 128)

d1 = gemm1()
d2 = gemm2()
txt = HEADER + "; @launch kernel=g1_kernel grid=(256,1,1) block=(256,1,1) lds=163840\n" \
    + "; @launch kernel=g2_kernel grid=(256,1,1) block=(256,1,1) lds=81920\n" \
    + '.amdgcn_target "amdgcn-amd-amdhsa--gfx950"\n.text\n' + "\n".join(out) + '\n.section .rodata,"a"\n.p2align 6\n' + d1 + ".p2align 6\n" + d2
open(sys.argv[1], "w").write(txt)
```

```python
import sys
out = []
def e(s): out.append("    " + s)
def lab(s): out.append(s + ":")

HEADER = open('standalone__dense_activation_relu__prompt.s.ref').read().split('; Override')[0]
OPTS = sys.argv[2:]
STAMP = "stamp" in OPTS
NOROT = "norot" in OPTS
NAME = "standalone__dense_activation_relu__prompt_kernel"

X_BYTES = 2048*640*2
W_BYTES = 640*1728*2
O_BYTES = 2048*640*2
FLG = 8 << 20
WS_USED = FLG + 4096
OOB = 0x7ff00000
OOB_A = 0x40000000
STG = 98304
LDS_BYTES = 163840

nst = [0]
def stamp(i=None):
    if not STAMP: return
    if i is None:
        i = nst[0]; nst[0] += 1
    assert i < 16
    e("s_memrealtime s[60:61]")
    e("s_memtime s[62:63]")
    e("s_waitcnt lgkmcnt(0)")
    e(f"s_mov_b32 s{64+2*i}, s60")
    e(f"s_mov_b32 s{65+2*i}, s62")
def stamp_flush():
    if not STAMP: return
    n = nst[0]
    e("s_mov_b32 s26, 0x10000000")
    e("s_lshl_b32 s60, s2, 2")
    e("s_add_u32 s60, s60, s36")
    e("s_lshl_b32 s60, s60, 8")
    e(f"s_add_u32 s60, s60, {(256<<20) - (4<<20)}")
    e("v_mov_b32 v21, 0")
    for i in range(2*n):
        e(f"v_mov_b32 v20, s{64+i}")
        e(f"buffer_store_dword v20, v21, s[24:27], s60 offen offset:{4*i}")
        e("s_nop 1")

def srd(d, lo, nbytes):
    e(f"s_mov_b32 s{d}, s{lo}")
    e(f"s_and_b32 s{d+1}, s{lo+1}, 0xffff")
    e(f"s_mov_b32 s{d+2}, {nbytes}")
    e(f"s_mov_b32 s{d+3}, 0x00020000")

vm = []
def vmop(tag, text):
    vm.append(tag); e(text)
def vm_n(tag):
    idx = max(i for i, t in enumerate(vm) if t == tag)
    return len(vm) - 1 - idx
def wait_vm(tag, extra=""):
    n = vm_n(tag)
    assert n <= 63, n
    e(f"s_waitcnt vmcnt({n}){extra}")

ACC = 32; FR = 96
B2 = 160
HV = 166
VPH = 172; VPR = 173; VRW = 174; VRR = 177; VOUT = 178; VONE = 179; VZERO = 180; VWD = 181; VWR = 185

def p2_setup(nt):
    if nt == 5:
        e("s_mul_i32 s57, s55, 5")
    else:
        e("s_mul_i32 s57, s55, 6")
        e("s_sub_u32 s57, s57, 22")
    e("s_mul_i32 s46, s57, 54")
    e("s_add_u32 s46, s46, s36")
    e("s_lshl_b32 s46, s46, 10")
    e("s_mul_i32 s45, s36, 40960")
    e("s_lshl_b32 s58, s56, 7")
    e("s_add_u32 s45, s45, s58")
    e("s_cmp_lt_u32 s36, 2")
    e(f"s_cselect_b32 s50, 0, {OOB_A}")
    e("s_cselect_b32 s3, 0, -163840")
    e("s_mul_i32 s48, s56, 1435")
    e("s_lshr_b32 s48, s48, 10")
    e("s_mul_i32 s58, s55, 5")
    e("s_add_u32 s48, s48, s58")
    e("s_mul_i32 s58, s48, 4682")
    e("s_lshr_b32 s58, s58, 16")
    e("s_mul_i32 s58, s58, 14")
    e("s_sub_u32 s48, s48, s58")
    if NOROT: e("s_mov_b32 s48, 0")
    e("s_mov_b32 s47, s48")
    e("s_lshl_b32 s100, s36, 14")
    e(f"s_add_u32 s100, s100, {STG}")
    e("v_lshlrev_b32 v17, 4, v2")
    e(f"v_mov_b32 v{HV}, v17")
    for t in range(1, nt):
        e(f"v_add_u32 v{HV+t}, {55296*t}, v17")
    e("v_lshrrev_b32 v12, 3, v2")
    e("v_mul_u32_u24 v12, 1280, v12")
    e("v_lshrrev_b32 v13, 4, v2")
    e("v_bfe_u32 v14, v2, 1, 2")
    e("v_xor_b32 v14, v14, v13")
    e("v_lshlrev_b32 v14, 1, v14")
    e("v_and_b32 v15, 1, v2")
    e("v_or_b32 v14, v14, v15")
    e("v_lshlrev_b32 v14, 4, v14")
    e(f"v_add_u32 v{VWD}, v12, v14")
    for rb in range(1, 4):
        e(f"v_add_u32 v{VWD+rb}, {rb*(10240-1024)}, v{VWD}")
    e("v_lshrrev_b32 v12, 2, v2")
    e("v_lshlrev_b32 v12, 7, v12")
    e("v_and_b32 v14, 3, v2")
    e("v_lshlrev_b32 v14, 3, v14")
    e("v_add_u32 v12, v12, v14")
    e("v_add_u32 v12, s100, v12")
    e("v_bfe_u32 v13, v2, 3, 2")
    for u in range(4):
        e(f"s_add_u32 s58, s36, {u}")
        e("s_and_b32 s58, s58, 3")
        e("v_xor_b32 v14, s58, v13")
        e("v_lshlrev_b32 v14, 5, v14")
        e(f"v_add_u32 v{VWR+u}, v12, v14")
        if u > 0:
            e(f"s_mul_i32 s59, s58, {3*nt*1024}")
            e(f"s_add_u32 s59, s59, {(u-1)*nt*1024}")
            e(f"v_add_u32 v{VRW+u-1}, s59, v17")
    e(f"s_mul_i32 s59, s36, {3*nt*1024}")
    e(f"v_add_u32 v{VRR}, s59, v17")
    e("v_and_b32 v12, 31, v2")
    e("v_min_u32 v12, 27, v12")
    e("v_lshlrev_b32 v12, 2, v12")
    e("v_lshrrev_b32 v14, 5, v2")
    e("v_lshlrev_b32 v14, 7, v14")
    e("v_add_u32 v12, v12, v14")
    e("s_lshr_b32 s59, s57, 2")
    e("s_lshl_b32 s59, s59, 7")
    e(f"s_add_u32 s59, s59, {FLG}")
    e(f"v_add_u32 v{VPH}, s59, v12")
    e("s_lshl_b32 s59, s57, 4")
    e(f"v_and_b32 v{VOUT}, 15, v2")
    e(f"v_add_u32 v{VOUT}, s59, v{VOUT}")
    e(f"v_mul_u32_u24 v{VOUT}, 1280, v{VOUT}")
    e("v_lshrrev_b32 v11, 4, v2")
    e("v_lshlrev_b32 v11, 3, v11")
    e(f"v_add_u32 v{VOUT}, v{VOUT}, v11")
    e("s_lshl_b32 s59, s56, 7")
    e("s_lshl_b32 s58, s36, 5")
    e("s_add_u32 s59, s59, s58")
    e(f"v_add_u32 v{VOUT}, s59, v{VOUT}")
    e(f"v_mov_b32 v{VONE}, 1")
    e(f"v_mov_b32 v{VZERO}, 0")

def sigma_step(base, stride, adj):
    L = []
    L.append(f"s_mul_i32 s51, s47, {stride}")
    L.append(f"s_add_u32 s51, s51, s{base}")
    L.append("s_cmp_eq_u32 s47, 13")
    L.append(f"s_cselect_b32 s52, s{adj}, 0")
    L.append("s_add_u32 s51, s51, s52")
    L.append("s_add_u32 s47, s47, 1")
    L.append("s_cmp_eq_u32 s47, 14")
    L.append("s_cselect_b32 s47, 0, s47")
    return L

def w2_items(j):
    it = []
    for rb in range(4):
        pre = [f"s_add_u32 m0, s100, {(j%4)*4096}"] + sigma_step(45, 163840, 3) if rb == 0 else []
        it.append((f"w{j}", f"buffer_load_dwordx4 v{VWD+rb}, s[96:99], s51 offen offset:{1024*rb} lds", pre))
    return it
def emit_items(items):
    for tg, tx, pre in items:
        for l in pre: e(l)
        vmop(tg, tx)
def w2_reads(j):
    for u in range(4):
        a = 16*j + 4*u
        e(f"ds_read_b64_tr_b16 a[{a}:{a+1}], v{VWR+u} offset:{(j%4)*4096}")
        e(f"ds_read_b64_tr_b16 a[{a+2}:{a+3}], v{VWR+u} offset:{(j%4)*4096+2048}")

spin_id = [0]
def spin(vaddr, srdlo, slp=1):
    k = spin_id[0]; spin_id[0] += 1
    e("s_mov_b32 s59, 0x40000")
    lab(f"Lspin{k}")
    e(f"buffer_load_dword v{VPR}, v{vaddr}, s[{srdlo}:{srdlo+3}], 0 offen sc1")
    e("s_waitcnt vmcnt(0)")
    e(f"v_cmp_eq_u32 vcc, 1, v{VPR}")
    e("s_cmp_eq_u64 vcc, -1")
    e(f"s_cbranch_scc1 Lspun{k}")
    e(f"s_sleep {slp}")
    e("s_sub_u32 s59, s59, 1")
    e("s_cmp_lg_u32 s59, 0")
    e(f"s_cbranch_scc1 Lspin{k}")
    lab(f"Lspun{k}")


def phase2(nt, gemm1):
    NS = 14; DIST = 3
    if nt == 5:
        HR = [("v", 112), ("v", 132), ("v", 192), ("v", 212), ("v", 232)]
    else:
        HR = [("v", 128), ("v", 192), ("v", 216), ("a", 224)]
    def hreg(j, t):
        k, r = HR[j % len(HR)]
        return f"{k}[{r+4*t}:{r+4*t+3}]"
    def h_items(j):
        it = []
        for t in range(nt):
            pre = sigma_step(46, 4096, 50) if t == 0 else []
            it.append((f"h{j}", f"buffer_load_dwordx4 {hreg(j, t)}, v{HV+t}, s[24:27], s51 offen sc1", pre))
        return it
    sfx = f"_{nt}"
    for j in range(NS):
        wait_vm(f"w{j}")
        w2_reads(j)
        if gemm1 and j == 4:
            e("s_cmp_eq_u32 s49, 0")
            e("s_cbranch_scc1 Lclr_ok")
            spin(VZERO, 32)
            lab("Lclr_ok")
            e("s_mov_b64 exec, 1")
            vmop("flag", f"buffer_store_dword v{VONE}, v{VZERO}, s[24:27], s44 offen sc1")
            e("s_mov_b64 exec, -1")
            e("s_cmp_eq_u32 s101, 0")
            e("s_cbranch_scc1 Lexit")
            stamp(6)
        if 1 <= j <= 10:
            e("s_waitcnt lgkmcnt(8)")
            emit_items(w2_items(j+3))
        if gemm1 and j == 8:
            vmop("poll2", f"buffer_load_dword v{VPR}, v{VPH}, s[24:27], 0 offen sc1")
        if j == 11:
            if gemm1:
                wait_vm("poll2")
                stamp(7)
                e(f"v_cmp_eq_u32 vcc, 1, v{VPR}")
                e("s_cmp_eq_u64 vcc, -1")
                e("s_cbranch_scc1 Lgo")
                spin(VPH, 24)
                lab("Lgo")
            else:
                stamp(6)
                spin(VZERO, 32)
                stamp(7)
                spin(VPH, 24, 8)
            stamp(8)
            e("s_mov_b32 s47, s48")
            for jj in range(DIST):
                emit_items(h_items(jj))
    e("s_waitcnt lgkmcnt(0)")
    for j in range(NS):
        wait_vm(f"h{j}")
        if j in (0, 7): stamp(9 + j//7)
        items = h_items(j+DIST) if j + DIST < NS else []
        order = [(u, t) for u in ((0, 1, 2, 3) if j < NS-1 else (1, 2, 3, 0)) for t in range(nt)]
        n = 0; pend = []
        for u, t in order:
            acc = ACC + (u*nt+t)*4
            c = "0" if j == 0 else f"v[{acc}:{acc+3}]"
            e(f"v_mfma_f32_16x16x32_bf16 v[{acc}:{acc+3}], a[{16*j+4*u}:{16*j+4*u+3}], {hreg(j, t)}, {c}")
            if n % 4 == 1 and items:
                emit_items([items.pop(0)])
            if j == NS-1:
                if u != 0: pend.append((u, t))
                if n >= nt and pend:
                    pu, pt = pend.pop(0)
                    pa = ACC + (pu*nt+pt)*4
                    e(f"ds_write_b128 v{VRW+pu-1}, v[{pa}:{pa+3}] offset:{pt*1024}")
            n += 1
        assert not items
    assert not pend
    stamp(11)
    e("s_waitcnt lgkmcnt(0)")
    e("s_barrier")
    groups = [128+4*k for k in range(8)] + [192+4*k for k in range(16)]
    for t in range(nt):
        for q in range(3):
            d = groups[t*3+q]
            e(f"ds_read_b128 v[{d}:{d+3}], v{VRR} offset:{(q*nt+t)*1024}")
    AF = ACC + nt*4
    for t in range(nt):
        e(f"s_waitcnt lgkmcnt({min(15, 3*(nt-1-t))})")
        a = ACC + t*4; d0, d1, d2 = groups[t*3:t*3+3]
        for hh in range(2):
            e(f"v_pk_add_f32 v[{d0+2*hh}:{d0+2*hh+1}], v[{d0+2*hh}:{d0+2*hh+1}], v[{d1+2*hh}:{d1+2*hh+1}]")
            e(f"v_pk_add_f32 v[{a+2*hh}:{a+2*hh+1}], v[{a+2*hh}:{a+2*hh+1}], v[{d2+2*hh}:{d2+2*hh+1}]")
        for hh in range(2):
            e(f"v_pk_add_f32 v[{a+2*hh}:{a+2*hh+1}], v[{a+2*hh}:{a+2*hh+1}], v[{d0+2*hh}:{d0+2*hh+1}]")
        e(f"v_cvt_pk_bf16_f32 v{AF+2*t}, v{a}, v{a+1}")
        e(f"v_cvt_pk_bf16_f32 v{AF+2*t+1}, v{a+2}, v{a+3}")
        e(f"s_mov_b32 s51, {20480*t}")
        e(f"buffer_store_dwordx2 v[{AF+2*t}:{AF+2*t+1}], v{VOUT}, s[28:31], s51 offen")
    stamp(12)
    if STAMP:
        e("s_waitcnt vmcnt(0)")
        stamp(13)
        nst[0] = 14
        stamp_flush()
    e("s_endpgm")

def kernel():
    out.append(f".globl {NAME}\n.p2align 8\n.type {NAME},@function\n{NAME}:")
    e("s_cmp_ge_u32 s2, 256")
    e("s_cbranch_scc1 Lexit")
    e("s_load_dwordx8 s[4:11], s[0:1], 0")
    e("s_load_dwordx4 s[12:15], s[0:1], 32")
    e("v_lshrrev_b32 v1, 6, v0")
    e("v_and_b32 v2, 63, v0")
    e("s_nop 0")
    e("v_readfirstlane_b32 s36, v1")
    e("s_and_b32 s53, s2, 7")
    e("s_lshr_b32 s54, s2, 3")
    e("s_cmp_ge_u32 s54, 28")
    e("s_cbranch_scc1 Lidle")
    e("s_mul_i32 s55, s54, 37")
    e("s_lshr_b32 s55, s55, 8")
    e("s_mul_i32 s56, s55, 7")
    e("s_sub_u32 s56, s54, s56")
    e("s_mul_i32 s39, s56, 3")
    e("s_mul_i32 s57, s55, 5")
    e("s_lshr_b32 s57, s57, 1")
    e("s_add_u32 s39, s39, s57")
    for _ in range(2):
        e("s_cmp_ge_u32 s39, 10")
        e("s_cselect_b32 s57, 10, 0")
        e("s_sub_u32 s39, s39, s57")
    if NOROT: e("s_mov_b32 s39, 0")
    e("s_lshr_b32 s57, s53, 1")
    e("s_lshl_b32 s57, s57, 2")
    e("s_add_u32 s55, s55, s57")
    e("s_and_b32 s57, s53, 1")
    e("s_mul_i32 s57, s57, 7")
    e("s_add_u32 s56, s56, s57")
    e("s_lshl_b32 s57, s56, 7")
    e("s_min_u32 s57, s57, 1600")
    e("v_lshrrev_b32 v12, 3, v2")
    e("v_mul_u32_u24 v12, 1280, v12")
    e("v_lshrrev_b32 v13, 4, v2")
    e("v_and_b32 v14, 7, v2")
    e("v_xor_b32 v14, v14, v13")
    for i in range(4):
        e(f"v_xor_b32 v15, {4*(i&1)}, v14")
        e("v_lshlrev_b32 v15, 4, v15")
        e("v_add_u32 v15, v15, v12")
        e(f"v_add_u32 v{3+i}, {i*(10240-1024)}, v15")
    e("v_mul_u32_u24 v12, 3456, v13")
    e("v_and_b32 v14, 15, v2")
    e("v_lshrrev_b32 v14, 1, v14")
    e("v_xor_b32 v14, v14, v13")
    e("v_and_b32 v16, 1, v2")
    for i in range(4):
        e(f"v_xor_b32 v15, {4*(i>>1)}, v14")
        e("v_lshlrev_b32 v15, 1, v15")
        e("v_or_b32 v15, v15, v16")
        e("v_lshlrev_b32 v15, 4, v15")
        e("v_add_u32 v15, v15, v12")
        e(f"v_add_u32 v{7+i}, {i*(13824-1024)}, v15")
    e("s_lshl_b32 s37, s55, 2")
    e("s_add_u32 s37, s37, s36")
    e("s_mul_i32 s37, s37, 40960")
    e("s_mul_i32 s38, s36, 55296")
    e("s_lshl_b32 s42, s57, 1")
    e("s_add_u32 s38, s38, s42")
    e("s_lshl_b32 s42, s36, 12")
    e("s_waitcnt lgkmcnt(0)")
    srd(16, 4, X_BYTES)
    srd(20, 6, W_BYTES)
    stamp(0)
    def stage_x(st):
        slot = st % 3
        L = ["s_lshl_b32 s40, s39, 7", "s_add_u32 s40, s40, s37", f"s_add_u32 m0, s42, {slot*32768}", "s_mul_i32 s41, s39, 221184"]
        D = [(f"st{st}", f"buffer_load_dwordx4 v{3+i}, s[16:19], s40 offen offset:{1024*i} lds") for i in range(4)]
        return L, D
    def stage_w(st):
        slot = st % 3
        L = ["s_add_u32 s41, s41, s38", f"s_add_u32 m0, s42, {slot*32768+16384}", "s_add_u32 s39, s39, 1", "s_cmp_eq_u32 s39, 10", "s_cselect_b32 s39, 0, s39"]
        D = [(f"st{st}", f"buffer_load_dwordx4 v{7+i}, s[20:23], s41 offen offset:{1024*i} lds") for i in range(4)]
        return L, D
    for st in range(2):
        for fn in (stage_x, stage_w):
            L, D = fn(st)
            for l in L: e(l)
            for t, d in D: vmop(t, d)
    stamp(1)
    srd(24, 14, WS_USED)
    srd(28, 10, O_BYTES)
    srd(32, 12, 256)
    srd(96, 8, W_BYTES)
    e("s_lshr_b32 s58, s36, 1")
    e("s_and_b32 s59, s36, 1")
    e("v_and_b32 v12, 15, v2")
    e("v_lshrrev_b32 v14, 1, v12")
    e("v_xor_b32 v14, v14, v13")
    e("v_lshlrev_b32 v14, 4, v14")
    e("v_lshlrev_b32 v12, 7, v12")
    e("v_add_u32 v12, v12, v14")
    e("s_lshl_b32 s51, s58, 13")
    e("v_add_u32 v22, s51, v12")
    e("v_xor_b32 v23, 64, v22")
    e("v_bfe_u32 v12, v2, 2, 2")
    e("v_lshlrev_b32 v14, 3, v13")
    e("v_add_u32 v14, v14, v12")
    e("v_lshlrev_b32 v14, 8, v14")
    e("v_and_b32 v15, 1, v13")
    e("v_lshlrev_b32 v15, 2, v15")
    e("v_or_b32 v15, v15, v12")
    e("v_and_b32 v16, 3, v2")
    e("v_lshlrev_b32 v16, 3, v16")
    e("v_add_u32 v14, v14, v16")
    e("v_add_u32 v14, 16384, v14")
    e("s_lshl_b32 s51, s59, 2")
    for nt in range(4):
        e(f"s_add_u32 s52, s51, {nt}")
        e("v_xor_b32 v16, s52, v15")
        e("v_lshlrev_b32 v16, 5, v16")
        e(f"v_add_u32 v{24+nt}, v14, v16")
    for i in range(6):
        e(f"v_add_u32 v{B2+i}, 0x10000, v{22+i}")
    e("s_lshl_b32 s51, s55, 3")
    e("s_lshl_b32 s52, s58, 2")
    e("s_add_u32 s51, s51, s52")
    e("s_mul_i32 s51, s51, 55296")
    e("s_lshr_b32 s52, s57, 5")
    e("s_lshl_b32 s43, s59, 1")
    e("s_add_u32 s52, s52, s43")
    e("s_lshl_b32 s52, s52, 10")
    e("s_add_u32 s51, s51, s52")
    e("v_lshlrev_b32 v18, 4, v2")
    e("v_add_u32 v18, s51, v18")
    e("s_lshl_b32 s51, s56, 1")
    e("s_add_u32 s51, s51, s59")
    e("s_cmp_eq_u32 s51, 26")
    e(f"s_cselect_b32 s43, {OOB_A}, 0")
    e("s_lshl_b32 s52, s55, 1")
    e("s_add_u32 s52, s52, s58")
    e("s_lshl_b32 s52, s52, 7")
    e("s_lshl_b32 s51, s51, 2")
    e("s_add_u32 s44, s51, s52")
    e(f"s_add_u32 s44, s44, {FLG}")
    e("s_mul_i32 s51, s53, 55")
    e("s_add_u32 s52, s51, 55")
    e("s_lshr_b32 s51, s51, 1")
    e("s_lshr_b32 s52, s52, 1")
    e("s_add_u32 s51, s51, s54")
    e("s_cmp_lt_u32 s51, s52")
    e("s_cselect_b32 s101, 1, 0")
    e("s_min_u32 s51, s51, 219")
    e("s_mul_i32 s55, s51, 205")
    e("s_lshr_b32 s55, s55, 11")
    e("s_mul_i32 s56, s55, 10")
    e("s_sub_u32 s56, s51, s56")
    p2_setup(5)
    def rbase(st, i):
        slot = st % 3
        return (f"v{22+i}", slot*32768) if slot < 2 else (f"v{B2+i}", 0)
    def read_list(st, u):
        L = []
        f = FR + 32*u
        for t in range(4):
            r, o = rbase(st, 2+t)
            L.append(f"ds_read_b64_tr_b16 v[{f+16+4*t}:{f+16+4*t+1}], {r} offset:{o+8192*u}")
            L.append(f"ds_read_b64_tr_b16 v[{f+16+4*t+2}:{f+16+4*t+3}], {r} offset:{o+8192*u+1024}")
            r, o = rbase(st, u)
            L.append(f"ds_read_b128 v[{f+4*t}:{f+4*t+3}], {r} offset:{o+2048*t}")
        return L
    def mfmas(u, reads, pre, vms, first=False):
        f = FR + 32*u
        for l in pre: e(l)
        k = 0; n = 0
        pos = {}
        for j in range(len(vms)):
            pos[(16*j)//len(vms) + 1] = j
        for nt in range(4):
            for mt in range(4):
                acc = ACC + (nt*4+mt)*4
                c = "0" if first else f"v[{acc}:{acc+3}]"
                e(f"v_mfma_f32_16x16x32_bf16 v[{acc}:{acc+3}], v[{f+16+4*nt}:{f+16+4*nt+3}], v[{f+4*mt}:{f+4*mt+3}], {c}")
                if k < len(reads):
                    e(reads[k]); k += 1
                if n in pos:
                    it = vms[pos[n]]
                    for l in it[2] if len(it) > 2 else []: e(l)
                    vmop(it[0], it[1])
                n += 1
    wait_vm("st0")
    e("s_barrier")
    for r in read_list(0, 0): e(r)
    stamp(2)
    early = {(8, 0): 0, (8, 1): 1, (9, 0): 2, (9, 1): 3}
    for s in range(10):
        pre = []; vms = []
        if s == 0:
            L, D = stage_x(2); pre += L; vms += D
            L, D = stage_w(2); vms += [(D[0][0], D[0][1], L)] + D[1:]
        elif s + 2 < 10:
            L, D = stage_w(s+2); pre += L; vms += D
        if (s, 0) in early:
            vms += w2_items(early[(s, 0)])
        e("s_waitcnt lgkmcnt(0)")
        mfmas(0, read_list(s, 1), pre, vms, first=(s == 0))
        if s < 9:
            tag = "poll" if s == 7 else f"st{s+1}"
            wait_vm(tag, " lgkmcnt(0)")
            e("s_barrier")
        else:
            e("s_waitcnt lgkmcnt(0)")
            e("s_barrier")
        pre = []; vms = []
        if s == 6:
            vmop("poll", f"buffer_load_dword v{VPR}, v{VZERO}, s[32:35], 0 offen sc1")
        if s == 7:
            e(f"v_cmp_eq_u32 vcc, 1, v{VPR}")
            e("s_cmp_eq_u64 vcc, -1")
            e("s_cselect_b32 s49, 0, 1")
        if s + 3 < 10:
            L, D = stage_x(s+3); pre += L; vms += D
        if (s, 1) in early:
            vms += w2_items(early[(s, 1)])
        mfmas(1, read_list(s+1, 0) if s < 9 else [], pre, vms)
        if s == 4: stamp(3)
    stamp(4)
    e("s_nop 7")
    for p in range(2):
        for mt in range(4):
            d = FR + (p*4+mt)*4
            for hh in range(2):
                acc = ACC + ((2*p+hh)*4+mt)*4
                e(f"v_cvt_pk_bf16_f32 v{d+2*hh}, v{acc}, v{acc+1}")
                e(f"v_cvt_pk_bf16_f32 v{d+2*hh+1}, v{acc+2}, v{acc+3}")
            for q in range(4):
                e(f"v_pk_max_i16 v{d+q}, v{d+q}, 0")
            e(f"s_add_u32 s51, s43, {mt*55296}")
            vmop("hst", f"buffer_store_dwordx4 v[{d}:{d+3}], v18, s[24:27], s51 offen offset:{1024*p} sc1")
    stamp(5)
    phase2(5, True)
    lab("Lidle")
    vm.clear()
    e("s_sub_u32 s55, s54, 28")
    e("s_lshl_b32 s55, s55, 3")
    e("s_add_u32 s51, s55, s53")
    e("s_waitcnt lgkmcnt(0)")
    srd(24, 14, WS_USED)
    srd(28, 10, O_BYTES)
    srd(32, 12, 256)
    srd(96, 8, W_BYTES)
    if STAMP:
        for i in range(2*6):
            e(f"s_mov_b32 s{64+i}, 0")
    stamp(0)
    e("s_cmp_lt_u32 s51, 30")
    e("s_cbranch_scc1 Lheavy")
    e("s_lshl_b32 s51, s51, 2")
    e("s_add_u32 s51, s51, s36")
    e("s_cmp_lg_u32 s51, 124")
    e("s_cbranch_scc1 Lexit")
    for q in range(4):
        e(f"v_mov_b32 v{32+q}, 0")
    e("v_lshlrev_b32 v8, 4, v2")
    e(f"s_mov_b32 s43, {FLG}")
    for q in range(4):
        e(f"buffer_store_dwordx4 v[32:35], v8, s[24:27], s43 offen offset:{1024*q} sc1")
    e("s_waitcnt vmcnt(0)")
    e("v_mov_b32 v12, 1")
    e("s_mov_b64 exec, 1")
    e("buffer_store_dword v12, v32, s[32:35], 0 offen sc1")
    e("s_endpgm")
    lab("Lheavy")
    e("s_mul_i32 s55, s51, 205")
    e("s_lshr_b32 s55, s55, 11")
    e("s_mul_i32 s56, s55, 10")
    e("s_sub_u32 s56, s51, s56")
    e("s_add_u32 s55, s55, 22")
    p2_setup(6)
    for j in range(4):
        emit_items(w2_items(j))
    phase2(6, False)
    lab("Lexit")
    e("s_endpgm")

kernel()
desc = f""".amdhsa_kernel {NAME}
  .amdhsa_next_free_vgpr 512
  .amdhsa_next_free_sgpr 102
  .amdhsa_accum_offset 256
  .amdhsa_group_segment_fixed_size 0
  .amdhsa_kernarg_size 48
  .amdhsa_user_sgpr_count 2
  .amdhsa_user_sgpr_kernarg_segment_ptr 1
  .amdhsa_system_sgpr_workgroup_id_x 1
.end_amdhsa_kernel
"""
txt = HEADER + f"; @launch grid=(256,1,1) block=(256,1,1) lds={LDS_BYTES}\n" \
    + '.amdgcn_target "amdgcn-amd-amdhsa--gfx950"\n.text\n' + "\n".join(out) + '\n.section .rodata,"a"\n.p2align 6\n' + desc
open(sys.argv[1], "w").write(txt)
print("stamps:", nst[0])
```

```python
import sys
out = []
def e(s): out.append("    " + s)
def lab(s): out.append(s + ":")

HEADER = open('standalone__dense_activation_relu__prompt.s.ref').read().split('; Override')[0]
OPTS = sys.argv[2:]
STAMP = "stamp" in OPTS
NOROT = "norot" in OPTS
NAME = "standalone__dense_activation_relu__prompt_kernel"

X_BYTES = 2048*640*2
W_BYTES = 640*1728*2
O_BYTES = 2048*640*2
FLG = 8 << 20
WS_USED = FLG + 32768
OOB = 0x7ff00000
OOB_A = 0x40000000
STG = 98304
LDS_BYTES = 163840

nst = [0]
def stamp(i=None):
    if not STAMP: return
    if i is None:
        i = nst[0]; nst[0] += 1
    assert i < 16
    e("s_memrealtime s[60:61]")
    e("s_memtime s[62:63]")
    e("s_waitcnt lgkmcnt(0)")
    e(f"s_mov_b32 s{64+2*i}, s60")
    e(f"s_mov_b32 s{65+2*i}, s62")
def stamp_flush():
    if not STAMP: return
    n = nst[0]
    e("s_mov_b32 s26, 0x10000000")
    e("s_lshl_b32 s60, s2, 2")
    e("s_add_u32 s60, s60, s36")
    e("s_lshl_b32 s60, s60, 8")
    e(f"s_add_u32 s60, s60, {(256<<20) - (4<<20)}")
    e("v_mov_b32 v21, 0")
    for i in range(2*n):
        e(f"v_mov_b32 v20, s{64+i}")
        e(f"buffer_store_dword v20, v21, s[24:27], s60 offen offset:{4*i}")
        e("s_nop 1")

def srd(d, lo, nbytes):
    e(f"s_mov_b32 s{d}, s{lo}")
    e(f"s_and_b32 s{d+1}, s{lo+1}, 0xffff")
    e(f"s_mov_b32 s{d+2}, {nbytes}")
    e(f"s_mov_b32 s{d+3}, 0x00020000")

vm = []
def vmop(tag, text):
    vm.append(tag); e(text)
def vm_n(tag):
    idx = max(i for i, t in enumerate(vm) if t == tag)
    return len(vm) - 1 - idx
def wait_vm(tag, extra=""):
    n = vm_n(tag)
    assert n <= 63, n
    e(f"s_waitcnt vmcnt({n}){extra}")

ACC = 32; FR = 96
B2 = 160
HV = 166
VPH = 172; VPR = 173; VRW = 174; VRR = 177; VOUT = 178; VONE = 179; VZERO = 180; VWD = 181; VWR = 185

def p2_setup(nt):
    if nt == 5:
        e("s_mul_i32 s57, s55, 5")
    else:
        e("s_mul_i32 s57, s55, 6")
        e("s_sub_u32 s57, s57, 22")
    e("s_mul_i32 s46, s57, 54")
    e("s_add_u32 s46, s46, s36")
    e("s_lshl_b32 s46, s46, 10")
    e("s_mul_i32 s45, s36, 40960")
    e("s_lshl_b32 s58, s56, 7")
    e("s_add_u32 s45, s45, s58")
    e("s_cmp_lt_u32 s36, 2")
    e(f"s_cselect_b32 s50, 0, {OOB_A}")
    e("s_cselect_b32 s3, 0, -163840")
    e("s_mul_i32 s48, s56, 1435")
    e("s_lshr_b32 s48, s48, 10")
    e("s_mul_i32 s58, s55, 5")
    e("s_add_u32 s48, s48, s58")
    e("s_mul_i32 s58, s48, 4682")
    e("s_lshr_b32 s58, s58, 16")
    e("s_mul_i32 s58, s58, 14")
    e("s_sub_u32 s48, s48, s58")
    if NOROT: e("s_mov_b32 s48, 0")
    e("s_mov_b32 s47, s48")
    e("s_lshl_b32 s100, s36, 14")
    e(f"s_add_u32 s100, s100, {STG}")
    e("v_lshlrev_b32 v17, 4, v2")
    e(f"v_mov_b32 v{HV}, v17")
    for t in range(1, nt):
        e(f"v_add_u32 v{HV+t}, {55296*t}, v17")
    e("v_lshrrev_b32 v12, 3, v2")
    e("v_mul_u32_u24 v12, 1280, v12")
    e("v_lshrrev_b32 v13, 4, v2")
    e("v_bfe_u32 v14, v2, 1, 2")
    e("v_xor_b32 v14, v14, v13")
    e("v_lshlrev_b32 v14, 1, v14")
    e("v_and_b32 v15, 1, v2")
    e("v_or_b32 v14, v14, v15")
    e("v_lshlrev_b32 v14, 4, v14")
    e(f"v_add_u32 v{VWD}, v12, v14")
    for rb in range(1, 4):
        e(f"v_add_u32 v{VWD+rb}, {rb*(10240-1024)}, v{VWD}")
    e("v_lshrrev_b32 v12, 2, v2")
    e("v_lshlrev_b32 v12, 7, v12")
    e("v_and_b32 v14, 3, v2")
    e("v_lshlrev_b32 v14, 3, v14")
    e("v_add_u32 v12, v12, v14")
    e("v_add_u32 v12, s100, v12")
    e("v_bfe_u32 v13, v2, 3, 2")
    for u in range(4):
        e(f"s_add_u32 s58, s36, {u}")
        e("s_and_b32 s58, s58, 3")
        e("v_xor_b32 v14, s58, v13")
        e("v_lshlrev_b32 v14, 5, v14")
        e(f"v_add_u32 v{VWR+u}, v12, v14")
        if u > 0:
            e(f"s_mul_i32 s59, s58, {3*nt*1024}")
            e(f"s_add_u32 s59, s59, {(u-1)*nt*1024}")
            e(f"v_add_u32 v{VRW+u-1}, s59, v17")
    e(f"s_mul_i32 s59, s36, {3*nt*1024}")
    e(f"v_add_u32 v{VRR}, s59, v17")
    e("s_lshr_b32 s59, s57, 3")
    e(f"s_add_u32 s58, s57, {nt-1}")
    e("s_lshr_b32 s58, s58, 3")
    e("s_cmp_eq_u32 s58, s59")
    e("s_cselect_b32 s58, 13, 27")
    e("s_mul_i32 s59, s59, 14")
    e("v_min_u32 v12, s58, v2")
    e("v_add_u32 v12, s59, v12")
    e("v_lshlrev_b32 v12, 7, v12")
    e(f"v_add_u32 v{VPH}, {FLG}, v12")
    e("s_lshl_b32 s59, s57, 4")
    e(f"v_and_b32 v{VOUT}, 15, v2")
    e(f"v_add_u32 v{VOUT}, s59, v{VOUT}")
    e(f"v_mul_u32_u24 v{VOUT}, 1280, v{VOUT}")
    e("v_lshrrev_b32 v11, 4, v2")
    e("v_lshlrev_b32 v11, 3, v11")
    e(f"v_add_u32 v{VOUT}, v{VOUT}, v11")
    e("s_lshl_b32 s59, s56, 7")
    e("s_lshl_b32 s58, s36, 5")
    e("s_add_u32 s59, s59, s58")
    e(f"v_add_u32 v{VOUT}, s59, v{VOUT}")
    e(f"v_mov_b32 v{VONE}, 1")
    e(f"v_mov_b32 v{VZERO}, 0")

def sigma_step(base, stride, adj):
    L = []
    L.append(f"s_mul_i32 s51, s47, {stride}")
    L.append(f"s_add_u32 s51, s51, s{base}")
    L.append("s_cmp_eq_u32 s47, 13")
    L.append(f"s_cselect_b32 s52, s{adj}, 0")
    L.append("s_add_u32 s51, s51, s52")
    L.append("s_add_u32 s47, s47, 1")
    L.append("s_cmp_eq_u32 s47, 14")
    L.append("s_cselect_b32 s47, 0, s47")
    return L

def w2_items(j):
    it = []
    for rb in range(4):
        pre = [f"s_add_u32 m0, s100, {(j%4)*4096}"] + sigma_step(45, 163840, 3) if rb == 0 else []
        it.append((f"w{j}", f"buffer_load_dwordx4 v{VWD+rb}, s[96:99], s51 offen offset:{1024*rb} lds", pre))
    return it
def emit_items(items):
    for tg, tx, pre in items:
        for l in pre: e(l)
        vmop(tg, tx)
def w2_reads(j):
    for u in range(4):
        a = 16*j + 4*u
        e(f"ds_read_b64_tr_b16 a[{a}:{a+1}], v{VWR+u} offset:{(j%4)*4096}")
        e(f"ds_read_b64_tr_b16 a[{a+2}:{a+3}], v{VWR+u} offset:{(j%4)*4096+2048}")

spin_id = [0]
def spin(vaddr, srdlo, slp=1):
    k = spin_id[0]; spin_id[0] += 1
    e("s_mov_b32 s59, 0x40000")
    lab(f"Lspin{k}")
    e(f"buffer_load_dword v{VPR}, v{vaddr}, s[{srdlo}:{srdlo+3}], 0 offen sc1")
    e("s_waitcnt vmcnt(0)")
    e(f"v_cmp_eq_u32 vcc, 1, v{VPR}")
    e("s_cmp_eq_u64 vcc, -1")
    e(f"s_cbranch_scc1 Lspun{k}")
    e(f"s_sleep {slp}")
    e("s_sub_u32 s59, s59, 1")
    e("s_cmp_lg_u32 s59, 0")
    e(f"s_cbranch_scc1 Lspin{k}")
    lab(f"Lspun{k}")


def phase2(nt, gemm1):
    NS = 14; DIST = 3
    if nt == 5:
        HR = [("v", 112), ("v", 132), ("v", 192), ("v", 212), ("v", 232)]
    else:
        HR = [("v", 128), ("v", 192), ("v", 216), ("a", 224)]
    def hreg(j, t):
        k, r = HR[j % len(HR)]
        return f"{k}[{r+4*t}:{r+4*t+3}]"
    def h_items(j):
        it = []
        for t in range(nt):
            pre = sigma_step(46, 4096, 50) if t == 0 else []
            it.append((f"h{j}", f"buffer_load_dwordx4 {hreg(j, t)}, v{HV+t}, s[24:27], s51 offen sc1", pre))
        return it
    sfx = f"_{nt}"
    for j in range(NS):
        wait_vm(f"w{j}")
        if gemm1 and j == 0: stamp(14)
        if gemm1 and j == 1: stamp(15)
        if gemm1 and j == 2: stamp(1)
        if gemm1 and j == 3: stamp(3)
        w2_reads(j)
        if gemm1 and j == 4:
            e("s_cmp_eq_u32 s49, 0")
            e("s_cbranch_scc1 Lclr_ok")
            spin(VZERO, 32)
            lab("Lclr_ok")
            e("s_barrier")
            e("s_mov_b64 exec, 1")
            vmop("flag", f"buffer_store_dword v{VONE}, v{VZERO}, s[24:27], s44 offen sc1")
            e("s_mov_b64 exec, -1")
            e("s_cmp_eq_u32 s101, 0")
            e("s_cbranch_scc1 Lexit")
            stamp(6)
        if 1 <= j <= 10:
            e("s_waitcnt lgkmcnt(8)")
            emit_items(w2_items(j+3))
        if gemm1 and j == 8:
            vmop("poll2", f"buffer_load_dword v{VPR}, v{VPH}, s[24:27], 0 offen sc1")
        if j == 11:
            if gemm1:
                wait_vm("poll2")
                stamp(7)
                e(f"v_cmp_eq_u32 vcc, 1, v{VPR}")
                e("s_cmp_eq_u64 vcc, -1")
                e("s_cbranch_scc1 Lgo")
                spin(VPH, 24)
                lab("Lgo")
            else:
                stamp(6)
                spin(VZERO, 32)
                stamp(7)
                spin(VPH, 24, 2)
            stamp(8)
            e("s_mov_b32 s47, s48")
            for jj in range(DIST):
                emit_items(h_items(jj))
    e("s_waitcnt lgkmcnt(0)")
    for j in range(NS):
        wait_vm(f"h{j}")
        if j in (0, 7): stamp(9 + j//7)
        items = h_items(j+DIST) if j + DIST < NS else []
        order = [(u, t) for u in ((0, 1, 2, 3) if j < NS-1 else (1, 2, 3, 0)) for t in range(nt)]
        n = 0; pend = []
        for u, t in order:
            acc = ACC + (u*nt+t)*4
            c = "0" if j == 0 else f"v[{acc}:{acc+3}]"
            e(f"v_mfma_f32_16x16x32_bf16 v[{acc}:{acc+3}], a[{16*j+4*u}:{16*j+4*u+3}], {hreg(j, t)}, {c}")
            if n % 4 == 1 and items:
                emit_items([items.pop(0)])
            if j == NS-1:
                if u != 0: pend.append((u, t))
                if n >= nt and pend:
                    pu, pt = pend.pop(0)
                    pa = ACC + (pu*nt+pt)*4
                    e(f"ds_write_b128 v{VRW+pu-1}, v[{pa}:{pa+3}] offset:{pt*1024}")
            n += 1
        assert not items
    assert not pend
    stamp(11)
    e("s_waitcnt lgkmcnt(0)")
    e("s_barrier")
    groups = [128+4*k for k in range(8)] + [192+4*k for k in range(16)]
    for t in range(nt):
        for q in range(3):
            d = groups[t*3+q]
            e(f"ds_read_b128 v[{d}:{d+3}], v{VRR} offset:{(q*nt+t)*1024}")
    AF = ACC + nt*4
    for t in range(nt):
        e(f"s_waitcnt lgkmcnt({min(15, 3*(nt-1-t))})")
        a = ACC + t*4; d0, d1, d2 = groups[t*3:t*3+3]
        for hh in range(2):
            e(f"v_pk_add_f32 v[{d0+2*hh}:{d0+2*hh+1}], v[{d0+2*hh}:{d0+2*hh+1}], v[{d1+2*hh}:{d1+2*hh+1}]")
            e(f"v_pk_add_f32 v[{a+2*hh}:{a+2*hh+1}], v[{a+2*hh}:{a+2*hh+1}], v[{d2+2*hh}:{d2+2*hh+1}]")
        for hh in range(2):
            e(f"v_pk_add_f32 v[{a+2*hh}:{a+2*hh+1}], v[{a+2*hh}:{a+2*hh+1}], v[{d0+2*hh}:{d0+2*hh+1}]")
        e(f"v_cvt_pk_bf16_f32 v{AF+2*t}, v{a}, v{a+1}")
        e(f"v_cvt_pk_bf16_f32 v{AF+2*t+1}, v{a+2}, v{a+3}")
        e(f"s_mov_b32 s51, {20480*t}")
        e(f"buffer_store_dwordx2 v[{AF+2*t}:{AF+2*t+1}], v{VOUT}, s[28:31], s51 offen")
    stamp(12)
    if STAMP:
        e("s_waitcnt vmcnt(0)")
        stamp(13)
        nst[0] = 16
        stamp_flush()
    e("s_endpgm")

def kernel():
    out.append(f".globl {NAME}\n.p2align 8\n.type {NAME},@function\n{NAME}:")
    e("s_cmp_ge_u32 s2, 256")
    e("s_cbranch_scc1 Lexit")
    e("s_load_dwordx8 s[4:11], s[0:1], 0")
    e("s_load_dwordx4 s[12:15], s[0:1], 32")
    e("v_lshrrev_b32 v1, 6, v0")
    e("v_and_b32 v2, 63, v0")
    e("s_nop 0")
    e("v_readfirstlane_b32 s36, v1")
    e("s_and_b32 s53, s2, 7")
    e("s_lshr_b32 s54, s2, 3")
    e("s_cmp_ge_u32 s54, 28")
    e("s_cbranch_scc1 Lidle")
    e("s_mul_i32 s55, s54, 37")
    e("s_lshr_b32 s55, s55, 8")
    e("s_mul_i32 s56, s55, 7")
    e("s_sub_u32 s56, s54, s56")
    e("s_mul_i32 s39, s56, 3")
    e("s_mul_i32 s57, s55, 5")
    e("s_lshr_b32 s57, s57, 1")
    e("s_add_u32 s39, s39, s57")
    for _ in range(2):
        e("s_cmp_ge_u32 s39, 10")
        e("s_cselect_b32 s57, 10, 0")
        e("s_sub_u32 s39, s39, s57")
    if NOROT: e("s_mov_b32 s39, 0")
    e("s_lshr_b32 s57, s53, 1")
    e("s_lshl_b32 s57, s57, 2")
    e("s_add_u32 s55, s55, s57")
    e("s_and_b32 s57, s53, 1")
    e("s_mul_i32 s57, s57, 7")
    e("s_add_u32 s56, s56, s57")
    e("s_lshl_b32 s57, s56, 7")
    e("s_min_u32 s57, s57, 1600")
    e("v_lshrrev_b32 v12, 3, v2")
    e("v_mul_u32_u24 v12, 1280, v12")
    e("v_lshrrev_b32 v13, 4, v2")
    e("v_and_b32 v14, 7, v2")
    e("v_xor_b32 v14, v14, v13")
    for i in range(4):
        e(f"v_xor_b32 v15, {4*(i&1)}, v14")
        e("v_lshlrev_b32 v15, 4, v15")
        e("v_add_u32 v15, v15, v12")
        e(f"v_add_u32 v{3+i}, {i*(10240-1024)}, v15")
    e("v_mul_u32_u24 v12, 3456, v13")
    e("v_and_b32 v14, 15, v2")
    e("v_lshrrev_b32 v14, 1, v14")
    e("v_xor_b32 v14, v14, v13")
    e("v_and_b32 v16, 1, v2")
    for i in range(4):
        e(f"v_xor_b32 v15, {4*(i>>1)}, v14")
        e("v_lshlrev_b32 v15, 1, v15")
        e("v_or_b32 v15, v15, v16")
        e("v_lshlrev_b32 v15, 4, v15")
        e("v_add_u32 v15, v15, v12")
        e(f"v_add_u32 v{7+i}, {i*(13824-1024)}, v15")
    e("s_lshl_b32 s37, s55, 2")
    e("s_add_u32 s37, s37, s36")
    e("s_mul_i32 s37, s37, 40960")
    e("s_mul_i32 s38, s36, 55296")
    e("s_lshl_b32 s42, s57, 1")
    e("s_add_u32 s38, s38, s42")
    e("s_lshl_b32 s42, s36, 12")
    e("s_waitcnt lgkmcnt(0)")
    srd(16, 4, X_BYTES)
    srd(20, 6, W_BYTES)
    stamp(0)
    def stage_x(st):
        slot = st % 3
        L = ["s_lshl_b32 s40, s39, 7", "s_add_u32 s40, s40, s37", f"s_add_u32 m0, s42, {slot*32768}", "s_mul_i32 s41, s39, 221184"]
        D = [(f"st{st}", f"buffer_load_dwordx4 v{3+i}, s[16:19], s40 offen offset:{1024*i} lds") for i in range(4)]
        return L, D
    def stage_w(st):
        slot = st % 3
        L = ["s_add_u32 s41, s41, s38", f"s_add_u32 m0, s42, {slot*32768+16384}", "s_add_u32 s39, s39, 1", "s_cmp_eq_u32 s39, 10", "s_cselect_b32 s39, 0, s39"]
        D = [(f"st{st}", f"buffer_load_dwordx4 v{7+i}, s[20:23], s41 offen offset:{1024*i} lds") for i in range(4)]
        return L, D
    for st in range(2):
        for fn in (stage_x, stage_w):
            L, D = fn(st)
            for l in L: e(l)
            for t, d in D: vmop(t, d)
    srd(24, 14, WS_USED)
    srd(28, 10, O_BYTES)
    srd(32, 12, 256)
    srd(96, 8, W_BYTES)
    e("s_lshr_b32 s58, s36, 1")
    e("s_and_b32 s59, s36, 1")
    e("v_and_b32 v12, 15, v2")
    e("v_lshrrev_b32 v14, 1, v12")
    e("v_xor_b32 v14, v14, v13")
    e("v_lshlrev_b32 v14, 4, v14")
    e("v_lshlrev_b32 v12, 7, v12")
    e("v_add_u32 v12, v12, v14")
    e("s_lshl_b32 s51, s58, 13")
    e("v_add_u32 v22, s51, v12")
    e("v_xor_b32 v23, 64, v22")
    e("v_bfe_u32 v12, v2, 2, 2")
    e("v_lshlrev_b32 v14, 3, v13")
    e("v_add_u32 v14, v14, v12")
    e("v_lshlrev_b32 v14, 8, v14")
    e("v_and_b32 v15, 1, v13")
    e("v_lshlrev_b32 v15, 2, v15")
    e("v_or_b32 v15, v15, v12")
    e("v_and_b32 v16, 3, v2")
    e("v_lshlrev_b32 v16, 3, v16")
    e("v_add_u32 v14, v14, v16")
    e("v_add_u32 v14, 16384, v14")
    e("s_lshl_b32 s51, s59, 2")
    for nt in range(4):
        e(f"s_add_u32 s52, s51, {nt}")
        e("v_xor_b32 v16, s52, v15")
        e("v_lshlrev_b32 v16, 5, v16")
        e(f"v_add_u32 v{24+nt}, v14, v16")
    for i in range(6):
        e(f"v_add_u32 v{B2+i}, 0x10000, v{22+i}")
    e("s_lshl_b32 s51, s55, 3")
    e("s_lshl_b32 s52, s58, 2")
    e("s_add_u32 s51, s51, s52")
    e("s_mul_i32 s51, s51, 55296")
    e("s_lshr_b32 s52, s57, 5")
    e("s_lshl_b32 s43, s59, 1")
    e("s_add_u32 s52, s52, s43")
    e("s_lshl_b32 s52, s52, 10")
    e("s_add_u32 s51, s51, s52")
    e("v_lshlrev_b32 v18, 4, v2")
    e("v_add_u32 v18, s51, v18")
    e("s_lshl_b32 s51, s56, 1")
    e("s_add_u32 s51, s51, s59")
    e("s_cmp_eq_u32 s51, 26")
    e(f"s_cselect_b32 s43, {OOB_A}, 0")
    e("s_mul_i32 s52, s55, 14")
    e("s_add_u32 s52, s52, s56")
    e("s_lshl_b32 s52, s52, 7")
    e(f"s_add_u32 s44, s52, {FLG}")
    e("s_cmp_eq_u32 s36, 0")
    e(f"s_cselect_b32 s44, s44, {OOB_A}")
    e("s_mul_i32 s51, s53, 55")
    e("s_add_u32 s52, s51, 55")
    e("s_lshr_b32 s51, s51, 1")
    e("s_lshr_b32 s52, s52, 1")
    e("s_add_u32 s51, s51, s54")
    e("s_cmp_lt_u32 s51, s52")
    e("s_cselect_b32 s101, 1, 0")
    e("s_min_u32 s51, s51, 219")
    e("s_mul_i32 s55, s51, 205")
    e("s_lshr_b32 s55, s55, 11")
    e("s_mul_i32 s56, s55, 10")
    e("s_sub_u32 s56, s51, s56")
    p2_setup(5)
    def rbase(st, i):
        slot = st % 3
        return (f"v{22+i}", slot*32768) if slot < 2 else (f"v{B2+i}", 0)
    def read_list(st, u):
        L = []
        f = FR + 32*u
        for t in range(4):
            r, o = rbase(st, 2+t)
            L.append(f"ds_read_b64_tr_b16 v[{f+16+4*t}:{f+16+4*t+1}], {r} offset:{o+8192*u}")
            L.append(f"ds_read_b64_tr_b16 v[{f+16+4*t+2}:{f+16+4*t+3}], {r} offset:{o+8192*u+1024}")
            r, o = rbase(st, u)
            L.append(f"ds_read_b128 v[{f+4*t}:{f+4*t+3}], {r} offset:{o+2048*t}")
        return L
    def mfmas(u, reads, pre, vms, first=False):
        f = FR + 32*u
        for l in pre: e(l)
        k = 0; n = 0
        pos = {}
        for j in range(len(vms)):
            pos[(16*j)//len(vms) + 1] = j
        for nt in range(4):
            for mt in range(4):
                acc = ACC + (nt*4+mt)*4
                c = "0" if first else f"v[{acc}:{acc+3}]"
                e(f"v_mfma_f32_16x16x32_bf16 v[{acc}:{acc+3}], v[{f+16+4*nt}:{f+16+4*nt+3}], v[{f+4*mt}:{f+4*mt+3}], {c}")
                if k < len(reads):
                    e(reads[k]); k += 1
                if n in pos:
                    it = vms[pos[n]]
                    for l in it[2] if len(it) > 2 else []: e(l)
                    vmop(it[0], it[1])
                n += 1
    wait_vm("st0")
    e("s_barrier")
    for r in read_list(0, 0): e(r)
    stamp(2)
    early = {(8, 0): 0, (8, 1): 1, (9, 0): 2, (9, 1): 3}
    for s in range(10):
        pre = []; vms = []
        if s == 0:
            L, D = stage_x(2); pre += L; vms += D
            L, D = stage_w(2); vms += [(D[0][0], D[0][1], L)] + D[1:]
        elif s + 2 < 10:
            L, D = stage_w(s+2); pre += L; vms += D
        if (s, 0) in early:
            vms += w2_items(early[(s, 0)])
        e("s_waitcnt lgkmcnt(0)")
        mfmas(0, read_list(s, 1), pre, vms, first=(s == 0))
        if s < 9:
            tag = "poll" if s == 7 else f"st{s+1}"
            wait_vm(tag, " lgkmcnt(0)")
            e("s_barrier")
        else:
            e("s_waitcnt lgkmcnt(0)")
            e("s_barrier")
        pre = []; vms = []
        if s == 6:
            vmop("poll", f"buffer_load_dword v{VPR}, v{VZERO}, s[32:35], 0 offen sc1")
        if s == 7:
            e(f"v_cmp_eq_u32 vcc, 1, v{VPR}")
            e("s_cmp_eq_u64 vcc, -1")
            e("s_cselect_b32 s49, 0, 1")
        if s + 3 < 10:
            L, D = stage_x(s+3); pre += L; vms += D
        if (s, 1) in early:
            vms += w2_items(early[(s, 1)])
        mfmas(1, read_list(s+1, 0) if s < 9 else [], pre, vms)
    stamp(4)
    e("s_nop 7")
    for p in range(2):
        for mt in range(4):
            d = FR + (p*4+mt)*4
            for hh in range(2):
                acc = ACC + ((2*p+hh)*4+mt)*4
                e(f"v_cvt_pk_bf16_f32 v{d+2*hh}, v{acc}, v{acc+1}")
                e(f"v_cvt_pk_bf16_f32 v{d+2*hh+1}, v{acc+2}, v{acc+3}")
            for q in range(4):
                e(f"v_pk_max_i16 v{d+q}, v{d+q}, 0")
            e(f"s_add_u32 s51, s43, {mt*55296}")
            vmop("hst", f"buffer_store_dwordx4 v[{d}:{d+3}], v18, s[24:27], s51 offen offset:{1024*p} sc1")
    stamp(5)
    phase2(5, True)
    lab("Lidle")
    vm.clear()
    e("s_sub_u32 s55, s54, 28")
    e("s_lshl_b32 s55, s55, 3")
    e("s_add_u32 s51, s55, s53")
    e("s_waitcnt lgkmcnt(0)")
    srd(24, 14, WS_USED)
    srd(28, 10, O_BYTES)
    srd(32, 12, 256)
    srd(96, 8, W_BYTES)
    if STAMP:
        for i in range(2*16):
            e(f"s_mov_b32 s{64+i}, 0")
    stamp(0)
    e("s_cmp_lt_u32 s51, 30")
    e("s_cbranch_scc1 Lheavy")
    e("s_cmp_lg_u32 s51, 31")
    e("s_cbranch_scc1 Lexit")
    for q in range(4):
        e(f"v_mov_b32 v{32+q}, 0")
    e("v_lshlrev_b32 v8, 4, v2")
    e("s_lshl_b32 s43, s36, 13")
    e(f"s_add_u32 s43, s43, {FLG}")
    for h in range(2):
        for q in range(4):
            e(f"buffer_store_dwordx4 v[32:35], v8, s[24:27], s43 offen offset:{1024*q} sc1")
        e("s_add_u32 s43, s43, 4096")
    e("s_waitcnt vmcnt(0)")
    e("s_barrier")
    e("s_cmp_lg_u32 s36, 0")
    e("s_cbranch_scc1 Lexit")
    e("v_mov_b32 v12, 1")
    e("s_mov_b64 exec, 1")
    e("buffer_store_dword v12, v32, s[32:35], 0 offen sc1")
    e("s_endpgm")
    lab("Lheavy")
    e("s_mul_i32 s55, s51, 205")
    e("s_lshr_b32 s55, s55, 11")
    e("s_mul_i32 s56, s55, 10")
    e("s_sub_u32 s56, s51, s56")
    e("s_add_u32 s55, s55, 22")
    p2_setup(6)
    for j in range(4):
        emit_items(w2_items(j))
    phase2(6, False)
    lab("Lexit")
    e("s_endpgm")

kernel()
desc = f""".amdhsa_kernel {NAME}
  .amdhsa_next_free_vgpr 512
  .amdhsa_next_free_sgpr 102
  .amdhsa_accum_offset 256
  .amdhsa_group_segment_fixed_size 0
  .amdhsa_kernarg_size 48
  .amdhsa_user_sgpr_count 2
  .amdhsa_user_sgpr_kernarg_segment_ptr 1
  .amdhsa_system_sgpr_workgroup_id_x 1
.end_amdhsa_kernel
"""
txt = HEADER + f"; @launch grid=(256,1,1) block=(256,1,1) lds={LDS_BYTES}\n" \
    + '.amdgcn_target "amdgcn-amd-amdhsa--gfx950"\n.text\n' + "\n".join(out) + '\n.section .rodata,"a"\n.p2align 6\n' + desc
open(sys.argv[1], "w").write(txt)
print("stamps:", nst[0])
```

```python
import sys
out = []
def e(s): out.append("    " + s)
def lab(s): out.append(s + ":")

HEADER = open('standalone__dense_activation_relu__prompt.s.ref').read().split('; Override')[0]
OPTS = sys.argv[2:]
def opt(name, dflt):
    for o in OPTS:
        if o.startswith(name + "="): return int(o.split("=")[1])
    return dflt
STAMP = "stamp" in OPTS
LOCAL = "local" in OPTS
PF2 = "pf2" in OPTS
NE = opt("E", 6)
E0 = opt("e0", 2)
B1 = opt("b1", 4)
PX = opt("px", 2)
DIST = opt("dist", 3)
NAME = "standalone__dense_activation_relu__prompt_kernel"

X_BYTES = 2048*640*2
W_BYTES = 640*1728*2
O_BYTES = 2048*640*2
FLG = 8 << 20
WS_USED = FLG + 32768
OOB_A = 0x40000000
ITEM = 5120
STG = 163840 - 12*ITEM
LDS_BYTES = 163840
NS = 14

def stamp(i):
    if not STAMP: return
    assert i < 16
    e("s_memrealtime s[60:61]")
    e("s_memtime s[62:63]")
    e("s_waitcnt lgkmcnt(0)")
    e(f"s_mov_b32 s{64+2*i}, s60")
    e(f"s_mov_b32 s{65+2*i}, s62")
def stamp_flush():
    if not STAMP: return
    e("s_mov_b32 s26, 0x10000000")
    e("s_lshl_b32 s60, s2, 2")
    e("s_add_u32 s60, s60, s36")
    e("s_lshl_b32 s60, s60, 8")
    e(f"s_add_u32 s60, s60, {(256<<20) - (4<<20)}")
    e("v_mov_b32 v21, 0")
    for i in range(32):
        e(f"v_mov_b32 v20, s{64+i}")
        e(f"buffer_store_dword v20, v21, s[24:27], s60 offen offset:{4*i}")
        e("s_nop 1")

def srd(d, lo, nbytes):
    e(f"s_mov_b32 s{d}, s{lo}")
    e(f"s_and_b32 s{d+1}, s{lo+1}, 0xffff")
    e(f"s_mov_b32 s{d+2}, {nbytes}")
    e(f"s_mov_b32 s{d+3}, 0x00020000")

vm = []
def vmop(tag, text):
    vm.append(tag); e(text)
def vm_idx(tag):
    return max(i for i, t in enumerate(vm) if t == tag)
def wait_vm(tags, extra=""):
    if isinstance(tags, str): tags = [tags]
    n = len(vm) - 1 - max(vm_idx(t) for t in tags)
    assert n <= 63, n
    e(f"s_waitcnt vmcnt({n}){extra}")

def capture(fn):
    n0 = len(out)
    fn()
    got = out[n0:]
    del out[n0:]
    groups = []
    for l in got:
        if l.strip().startswith("s_cselect") and groups:
            groups[-1].append(l)
        else:
            groups.append([l])
    return groups

ACC = 32; FR = 96
B2 = 160
HV = 166
VPH = 172; VPR = 173; VRW = 174; VRR = 177; VOUT = 178; VONE = 179; VZERO = 180; VWD = 181; VWR = 186
WX = 224
HR = [112, 128, 144, 192, 208]

def tile_map(idle):
    if idle:
        e("s_sub_u32 s51, s54, 28")
        e("s_lshr_b32 s55, s51, 1")
        e("s_and_b32 s51, s51, 1")
        e("s_add_u32 s51, s51, 14")
    else:
        e("s_cmp_ge_u32 s54, 14")
        e("s_cselect_b32 s55, 1, 0")
        e("s_mul_i32 s51, s55, 14")
        e("s_sub_u32 s51, s54, s51")
    e("s_cmp_ge_u32 s51, 14")
    e("s_cselect_b32 s48, 14, 0")
    e("s_sub_u32 s48, s51, s48")
    e("s_lshl_b32 s56, s55, 2")
    e("s_add_u32 s56, s56, s51")
    e("s_and_b32 s56, s56, 7")
    e("s_lshr_b32 s51, s51, 3")
    e("s_lshl_b32 s57, s55, 1")
    e("s_add_u32 s57, s57, s51")
    e("s_lshl_b32 s57, s57, 2")
    e("s_lshl_b32 s51, s53, 4")
    e("s_add_u32 s57, s57, s51")
    e("s_lshl_b32 s51, s53, 1")
    e("s_add_u32 s55, s55, s51")

def p2_setup_w2():
    e("s_mul_i32 s45, s36, 40960")
    e("s_mul_i32 s58, s56, 160")
    e("s_add_u32 s45, s45, s58")
    e("s_cmp_lt_u32 s36, 2")
    e(f"s_cselect_b32 s50, 0, {OOB_A}")
    e("s_cselect_b32 s3, 0, -163840")
    e("s_mov_b32 s47, s48")
    e(f"s_mul_i32 s100, s36, {3*ITEM}")
    e(f"s_add_u32 s100, s100, {STG}")
    e(f"s_mul_i32 s101, s36, {5*ITEM}")
    for q in range(5):
        e(f"v_add_u32 v12, {64*q}, v2")
        e("v_mul_u32_u24 v13, 205, v12")
        e("v_lshrrev_b32 v13, 11, v13")
        e("v_mul_u32_u24 v14, 10, v13")
        e("v_sub_u32 v14, v12, v14")
        e("v_mul_u32_u24 v13, 1280, v13")
        e("v_lshlrev_b32 v14, 4, v14")
        e("v_add_u32 v13, v13, v14")
        e(f"v_subrev_u32 v{VWD+q}, {1024*(q%4)}, v13")
    e("v_lshrrev_b32 v12, 2, v2")
    e("v_mul_u32_u24 v12, 160, v12")
    e("v_and_b32 v14, 3, v2")
    e("v_lshlrev_b32 v14, 3, v14")
    e("v_add_u32 v12, v12, v14")
    e(f"v_add_u32 v{VWR}, s100, v12")
    e(f"v_add_u32 v{VWR+1}, s101, v12")

def p2_setup_rest():
    e("s_mul_i32 s46, s57, 54")
    e("s_add_u32 s46, s46, s36")
    e("s_lshl_b32 s46, s46, 10")
    e("v_lshlrev_b32 v17, 4, v2")
    for t in range(4):
        e(f"s_add_u32 s58, s36, {t}")
        e("s_and_b32 s58, s58, 3")
        e("s_mul_i32 s59, s58, 55296")
        e(f"v_add_u32 v{HV+t}, s59, v17")
        e("s_mul_i32 s59, s58, 15360")
        if t == 0:
            e(f"v_add_u32 v{VRR}, s59, v17")
        else:
            e(f"s_add_u32 s59, s59, {(t-1)*5120}")
            e(f"v_add_u32 v{VRW+t-1}, s59, v17")
    e("s_mul_i32 s59, s55, 14")
    e("v_min_u32 v12, 13, v2")
    e("v_add_u32 v12, s59, v12")
    e("v_lshlrev_b32 v12, 7, v12")
    e(f"v_add_u32 v{VPH}, {FLG}, v12")
    e("s_add_u32 s59, s57, s36")
    e("s_lshl_b32 s59, s59, 4")
    e(f"v_and_b32 v{VOUT}, 15, v2")
    e(f"v_add_u32 v{VOUT}, s59, v{VOUT}")
    e(f"v_mul_u32_u24 v{VOUT}, 1280, v{VOUT}")
    e("v_lshrrev_b32 v11, 4, v2")
    e("v_lshlrev_b32 v11, 3, v11")
    e(f"v_add_u32 v{VOUT}, v{VOUT}, v11")
    e("s_mul_i32 s59, s56, 160")
    e(f"v_add_u32 v{VOUT}, s59, v{VOUT}")
    e(f"v_mov_b32 v{VONE}, 1")
    e(f"v_mov_b32 v{VZERO}, 0")

def sigma_step(ctr, base, stride, adj, d=51):
    L = []
    L.append(f"s_mul_i32 s{d}, s{ctr}, {stride}")
    L.append(f"s_add_u32 s{d}, s{d}, s{base}")
    L.append(f"s_cmp_eq_u32 s{ctr}, 13")
    L.append(f"s_cselect_b32 s52, s{adj}, 0")
    L.append(f"s_add_u32 s{d}, s{d}, s52")
    L.append(f"s_add_u32 s{ctr}, s{ctr}, 1")
    L.append(f"s_cmp_eq_u32 s{ctr}, 14")
    L.append(f"s_cselect_b32 s{ctr}, 0, s{ctr}")
    return L

class W2:
    def __init__(s, free):
        s.free = list(free); s.slot = {}; s.nxt = 0; s.drained = 0; s.pending_free = []
    def can_issue(s): return s.nxt < NS and len(s.free) > 0
    def issue(s):
        k = s.nxt; s.nxt += 1
        sl = s.free.pop(0); s.slot[k] = sl
        m0 = f"s_add_u32 m0, s100, {sl*ITEM}" if sl < 3 else f"s_add_u32 m0, s101, {(sl-3)*ITEM}"
        it = []
        for q in range(5):
            pre = [m0] + sigma_step(47, 45, 163840, 3, 57) if q == 0 else ["s_add_u32 m0, m0, 4096"] if q == 4 else []
            it.append((f"w{k}", f"buffer_load_dwordx4 v{VWD+q}, s[96:99], s57 offen offset:{1024*(q%4)} lds", pre))
        return it
    def drain(s):
        k = s.drained; s.drained += 1
        assert k < s.nxt
        sl = s.slot[k]
        r, o = (VWR, sl*ITEM) if sl < 3 else (VWR+1, (sl-3)*ITEM)
        L = []
        for u in range(5):
            kk, a = wreg(k, u)
            L.append(f"ds_read_b64_tr_b16 {kk}[{a}:{a+1}], v{r} offset:{o+32*u}")
            L.append(f"ds_read_b64_tr_b16 {kk}[{a+2}:{a+3}], v{r} offset:{o+32*u+2560}")
        s.pending_free.append(sl)
        return L
    def lgkm_done(s):
        s.free += s.pending_free; s.pending_free = []
def wreg(j, u):
    f = 20*j + 4*u
    return ("a", f) if f < 256 else ("v", WX + f - 256)
def emit_items(items):
    for tg, tx, pre in items:
        for l in pre: e(l)
        vmop(tg, tx)

spin_id = [0]
def spin(vaddr, srdlo, slp=1):
    k = spin_id[0]; spin_id[0] += 1
    e("s_mov_b32 s59, 0x40000")
    lab(f"Lspin{k}")
    e(f"buffer_load_dword v{VPR}, v{vaddr}, s[{srdlo}:{srdlo+3}], 0 offen sc1")
    e("s_waitcnt vmcnt(0)")
    e(f"v_cmp_eq_u32 vcc, 1, v{VPR}")
    e("s_cmp_eq_u64 vcc, -1")
    e(f"s_cbranch_scc1 Lspun{k}")
    e(f"s_sleep {slp}")
    e("s_sub_u32 s59, s59, 1")
    e("s_cmp_lg_u32 s59, 0")
    e(f"s_cbranch_scc1 Lspin{k}")
    lab(f"Lspun{k}")
slow = []
def need_flag():
    k = spin_id[0]; spin_id[0] += 1
    e("s_bitcmp1_b32 s40, s41")
    e(f"s_cbranch_scc0 Lslow{k}")
    lab(f"Lspun{k}")
    L = [f"Lslow{k}:", "    s_mov_b32 s59, 0x40000", f"Lspin{k}:",
         f"    buffer_load_dword v{VPR}, v{VPH}, s[24:27], 0 offen sc1",
         "    s_waitcnt vmcnt(0)",
         f"    v_cmp_eq_u32 vcc, 1, v{VPR}",
         "    s_mov_b32 s40, vcc_lo",
         "    s_bitcmp1_b32 s40, s41",
         f"    s_cbranch_scc1 Lspun{k}",
         "    s_sleep 1",
         "    s_sub_u32 s59, s59, 1",
         "    s_cmp_lg_u32 s59, 0",
         f"    s_cbranch_scc1 Lspin{k}",
         f"    s_branch Lspun{k}"]
    slow.extend(L)

def hreg(j, t):
    r = HR[j % len(HR)]
    return f"v[{r+4*t}:{r+4*t+3}]"
def h_items(j):
    it = []
    for t in range(4):
        pre = ["@flag"] + sigma_step(41, 46, 4096, 50) if t == 0 else []
        it.append((f"h{j}", f"buffer_load_dwordx4 {hreg(j, t)}, v{HV+t}, s[24:27], s51 offen sc1", pre))
    return it
def emit_items(items):
    for tg, tx, pre in items:
        for l in pre:
            if l == "@flag": need_flag()
            else: e(l)
        vmop(tg, tx)

def main_loop(w):
    e("s_mov_b32 s41, s48")
    for jj in range(DIST):
        emit_items(h_items(jj))
    stamp(8)
    assert w.drained >= 1
    barrier_done = False
    for j in range(NS):
        wait_vm(f"h{j}", " lgkmcnt(0)")
        w.lgkm_done()
        assert w.drained > j
        if j in (0, 7): stamp(9 + j//7)
        if w.drained == NS and not barrier_done:
            e("s_barrier")
            barrier_done = True
        items = h_items(j+DIST) if j + DIST < NS else []
        witems = w.issue() if w.can_issue() else []
        reads = []
        for _ in range(2):
            if w.drained < w.nxt and vm_idx(f"w{w.drained}") < vm_idx(f"h{j}") if f"w{w.drained}" in vm else False:
                reads += w.drain()
        order = [(t, u) for t in ((0, 1, 2, 3) if j < NS-1 else (1, 2, 3, 0)) for u in range(5)]
        n = 0; pend = []
        for t, u in order:
            acc = ACC + (t*5+u)*4
            c = "0" if j == 0 else f"v[{acc}:{acc+3}]"
            kk, a = wreg(j, u)
            e(f"v_mfma_f32_16x16x32_bf16 v[{acc}:{acc+3}], {kk}[{a}:{a+3}], {hreg(j, t)}, {c}")
            if reads: e(reads.pop(0))
            if n % 4 == 1 and items:
                emit_items([items.pop(0)])
            elif n % 2 == 0 and n >= 2 and witems and not (n % 4 == 2 and False):
                emit_items([witems.pop(0)])
            if j == NS-1:
                if t != 0: pend.append((t, u))
                if n >= 5 and pend:
                    pt, pu = pend.pop(0)
                    pa = ACC + (pt*5+pu)*4
                    e(f"ds_write_b128 v{VRW+pt-1}, v[{pa}:{pa+3}] offset:{pu*1024}")
            n += 1
        assert not items and not witems and not reads
    assert not pend and barrier_done
    stamp(11)
    e("s_waitcnt lgkmcnt(0)")
    e("s_barrier")
    groups = [112+4*k for k in range(12)] + [192+4*k for k in range(3)]
    AF = 204
    for u in range(5):
        for q in range(3):
            d = groups[u*3+q]
            e(f"ds_read_b128 v[{d}:{d+3}], v{VRR} offset:{(q*5+u)*1024}")
    for u in range(5):
        e(f"s_waitcnt lgkmcnt({3*(4-u)})")
        a = ACC + 4*u; d0, d1, d2 = groups[u*3:u*3+3]
        for hh in range(2):
            e(f"v_pk_add_f32 v[{d0+2*hh}:{d0+2*hh+1}], v[{d0+2*hh}:{d0+2*hh+1}], v[{d1+2*hh}:{d1+2*hh+1}]")
            e(f"v_pk_add_f32 v[{a+2*hh}:{a+2*hh+1}], v[{a+2*hh}:{a+2*hh+1}], v[{d2+2*hh}:{d2+2*hh+1}]")
        for hh in range(2):
            e(f"v_pk_add_f32 v[{a+2*hh}:{a+2*hh+1}], v[{a+2*hh}:{a+2*hh+1}], v[{d0+2*hh}:{d0+2*hh+1}]")
        e(f"v_cvt_pk_bf16_f32 v{AF+2*u}, v{a}, v{a+1}")
        e(f"v_cvt_pk_bf16_f32 v{AF+2*u+1}, v{a+2}, v{a+3}")
        e(f"buffer_store_dwordx2 v[{AF+2*u}:{AF+2*u+1}], v{VOUT}, s[28:31], 0 offen offset:{32*u}")
    stamp(12)
    if STAMP:
        e("s_waitcnt vmcnt(0)")
        stamp(13)
        stamp_flush()
    e("s_endpgm")

def kernel():
    out.append(f".globl {NAME}\n.p2align 8\n.type {NAME},@function\n{NAME}:")
    e("s_cmp_ge_u32 s2, 256")
    e("s_cbranch_scc1 Lexit")
    e("s_load_dwordx8 s[4:11], s[0:1], 0")
    e("s_load_dwordx4 s[12:15], s[0:1], 32")
    e("v_lshrrev_b32 v1, 6, v0")
    e("v_and_b32 v2, 63, v0")
    e("s_nop 0")
    e("v_readfirstlane_b32 s36, v1")
    e("s_and_b32 s53, s2, 7")
    e("s_lshr_b32 s54, s2, 3")
    e("s_cmp_ge_u32 s54, 28")
    e("s_cbranch_scc1 Lidle")
    if LOCAL:
        e("s_cmp_ge_u32 s54, 14")
        e("s_cselect_b32 s55, 1, 0")
        e("s_mul_i32 s56, s55, 14")
        e("s_sub_u32 s56, s54, s56")
        e("s_mul_i32 s39, s56, 47")
        e("s_lshr_b32 s39, s39, 6")
        e("s_mul_i32 s57, s55, 5")
        e("s_add_u32 s39, s39, s57")
        e("s_cmp_ge_u32 s39, 10")
        e("s_cselect_b32 s57, 10, 0")
        e("s_sub_u32 s39, s39, s57")
        e("s_lshl_b32 s57, s53, 1")
        e("s_add_u32 s55, s55, s57")
    else:
        e("s_mul_i32 s55, s54, 37")
        e("s_lshr_b32 s55, s55, 8")
        e("s_mul_i32 s56, s55, 7")
        e("s_sub_u32 s56, s54, s56")
        e("s_mul_i32 s39, s56, 3")
        e("s_mul_i32 s57, s55, 5")
        e("s_lshr_b32 s57, s57, 1")
        e("s_add_u32 s39, s39, s57")
        for _ in range(2):
            e("s_cmp_ge_u32 s39, 10")
            e("s_cselect_b32 s57, 10, 0")
            e("s_sub_u32 s39, s39, s57")
        e("s_lshr_b32 s57, s53, 1")
        e("s_lshl_b32 s57, s57, 2")
        e("s_add_u32 s55, s55, s57")
        e("s_and_b32 s57, s53, 1")
        e("s_mul_i32 s57, s57, 7")
        e("s_add_u32 s56, s56, s57")
    e("s_lshl_b32 s57, s56, 7")
    e("s_min_u32 s57, s57, 1600")
    e("v_lshrrev_b32 v12, 3, v2")
    e("v_mul_u32_u24 v12, 1280, v12")
    e("v_lshrrev_b32 v13, 4, v2")
    e("v_and_b32 v14, 7, v2")
    e("v_xor_b32 v14, v14, v13")
    for i in range(4):
        e(f"v_xor_b32 v15, {4*(i&1)}, v14")
        e("v_lshlrev_b32 v15, 4, v15")
        e("v_add_u32 v15, v15, v12")
        e(f"v_add_u32 v{3+i}, {i*(10240-1024)}, v15")
    e("v_mul_u32_u24 v12, 3456, v13")
    e("v_and_b32 v14, 15, v2")
    e("v_lshrrev_b32 v14, 1, v14")
    e("v_xor_b32 v14, v14, v13")
    e("v_and_b32 v16, 1, v2")
    for i in range(4):
        e(f"v_xor_b32 v15, {4*(i>>1)}, v14")
        e("v_lshlrev_b32 v15, 1, v15")
        e("v_or_b32 v15, v15, v16")
        e("v_lshlrev_b32 v15, 4, v15")
        e("v_add_u32 v15, v15, v12")
        e(f"v_add_u32 v{7+i}, {i*(13824-1024)}, v15")
    e("s_lshl_b32 s37, s55, 2")
    e("s_add_u32 s37, s37, s36")
    e("s_mul_i32 s37, s37, 40960")
    e("s_mul_i32 s38, s36, 55296")
    e("s_lshl_b32 s42, s57, 1")
    e("s_add_u32 s38, s38, s42")
    e("s_lshl_b32 s42, s36, 12")
    e("s_waitcnt lgkmcnt(0)")
    srd(16, 4, X_BYTES)
    srd(20, 6, W_BYTES)
    stamp(0)
    def stage_x(st):
        slot = st % 3
        L = ["s_lshl_b32 s40, s39, 7", "s_add_u32 s40, s40, s37", f"s_add_u32 m0, s42, {slot*32768}", "s_mul_i32 s41, s39, 221184"]
        D = [(f"st{st}", f"buffer_load_dwordx4 v{3+i}, s[16:19], s40 offen offset:{1024*i} lds", []) for i in range(4)]
        return L, D
    def stage_w(st):
        slot = st % 3
        L = ["s_add_u32 s41, s41, s38", f"s_add_u32 m0, s42, {slot*32768+16384}", "s_add_u32 s39, s39, 1", "s_cmp_eq_u32 s39, 10", "s_cselect_b32 s39, 0, s39"]
        D = [(f"st{st}", f"buffer_load_dwordx4 v{7+i}, s[20:23], s41 offen offset:{1024*i} lds", []) for i in range(4)]
        return L, D
    def issue_stage(st):
        for fn in (stage_x, stage_w):
            L, D = fn(st)
            for l in L: e(l)
            emit_items(D)
    issue_stage(0)
    e("s_lshr_b32 s58, s36, 1")
    e("s_and_b32 s59, s36, 1")
    e("v_and_b32 v12, 15, v2")
    e("v_lshrrev_b32 v14, 1, v12")
    e("v_xor_b32 v14, v14, v13")
    e("v_lshlrev_b32 v14, 4, v14")
    e("v_lshlrev_b32 v12, 7, v12")
    e("v_add_u32 v12, v12, v14")
    e("s_lshl_b32 s51, s58, 13")
    e("v_add_u32 v22, s51, v12")
    e("v_xor_b32 v23, 64, v22")
    e("v_bfe_u32 v12, v2, 2, 2")
    e("v_lshlrev_b32 v14, 3, v13")
    e("v_add_u32 v14, v14, v12")
    e("v_lshlrev_b32 v14, 8, v14")
    e("v_and_b32 v15, 1, v13")
    e("v_lshlrev_b32 v15, 2, v15")
    e("v_or_b32 v15, v15, v12")
    e("v_and_b32 v16, 3, v2")
    e("v_lshlrev_b32 v16, 3, v16")
    e("v_add_u32 v14, v14, v16")
    e("v_add_u32 v14, 16384, v14")
    e("s_lshl_b32 s51, s59, 2")
    for nt in range(4):
        e(f"s_add_u32 s52, s51, {nt}")
        e("v_xor_b32 v16, s52, v15")
        e("v_lshlrev_b32 v16, 5, v16")
        e(f"v_add_u32 v{24+nt}, v14, v16")
    issue_stage(1)
    for i in range(6):
        e(f"v_add_u32 v{B2+i}, 0x10000, v{22+i}")
    srd(24, 14, WS_USED)
    srd(28, 10, O_BYTES)
    srd(32, 12, 256)
    srd(96, 8, W_BYTES)
    e("s_lshl_b32 s51, s55, 3")
    e("s_lshl_b32 s52, s58, 2")
    e("s_add_u32 s51, s51, s52")
    e("s_mul_i32 s51, s51, 55296")
    e("s_lshr_b32 s52, s57, 5")
    e("s_lshl_b32 s43, s59, 1")
    e("s_add_u32 s52, s52, s43")
    e("s_lshl_b32 s52, s52, 10")
    e("s_add_u32 s51, s51, s52")
    e("v_lshlrev_b32 v18, 4, v2")
    e("v_add_u32 v18, s51, v18")
    e("s_lshl_b32 s51, s56, 1")
    e("s_add_u32 s51, s51, s59")
    e("s_cmp_eq_u32 s51, 26")
    e(f"s_cselect_b32 s43, {OOB_A}, 0")
    e("s_mul_i32 s52, s55, 14")
    e("s_add_u32 s52, s52, s56")
    e("s_lshl_b32 s52, s52, 7")
    e(f"s_add_u32 s44, s52, {FLG}")
    e("s_cmp_eq_u32 s36, 0")
    e(f"s_cselect_b32 s44, s44, {OOB_A}")
    tile_map(False)
    p2_setup_w2()
    p2_setup_rest()
    stamp(1)
    def rbase(st, i):
        slot = st % 3
        return (f"v{22+i}", slot*32768) if slot < 2 else (f"v{B2+i}", 0)
    def read_list(st, u):
        L = []
        f = FR + 32*u
        for t in range(4):
            r, o = rbase(st, 2+t)
            L.append(f"ds_read_b64_tr_b16 v[{f+16+4*t}:{f+16+4*t+1}], {r} offset:{o+8192*u}")
            L.append(f"ds_read_b64_tr_b16 v[{f+16+4*t+2}:{f+16+4*t+3}], {r} offset:{o+8192*u+1024}")
            r, o = rbase(st, u)
            L.append(f"ds_read_b128 v[{f+4*t}:{f+4*t+3}], {r} offset:{o+2048*t}")
        return L
    def h_out(p, mt):
        d = FR + (p*4+mt)*4
        for hh in range(2):
            acc = ACC + ((2*p+hh)*4+mt)*4
            e(f"v_cvt_pk_bf16_f32 v{d+2*hh}, v{acc}, v{acc+1}")
            e(f"v_cvt_pk_bf16_f32 v{d+2*hh+1}, v{acc+2}, v{acc+3}")
        for q in range(4):
            e(f"v_pk_max_i16 v{d+q}, v{d+q}, 0")
        e(f"s_add_u32 s51, s43, {mt*55296}")
        vmop("hst", f"buffer_store_dwordx4 v[{d}:{d+3}], v18, s[24:27], s51 offen offset:{1024*p} sc1")
    def mfmas(u, reads, extra, pre, vms, first=False, last=False):
        f = FR + 32*u
        for l in pre: e(l)
        n = 0
        pos = {}
        for j in range(len(vms)):
            pos[((8 if last else 16)*j)//len(vms) + (0 if last else 1)] = j
        for nt in range(4):
            for mt in range(4):
                acc = ACC + (nt*4+mt)*4
                c = "0" if first else f"v[{acc}:{acc+3}]"
                e(f"v_mfma_f32_16x16x32_bf16 v[{acc}:{acc+3}], v[{f+16+4*nt}:{f+16+4*nt+3}], v[{f+4*mt}:{f+4*mt+3}], {c}")
                if reads: e(reads.pop(0))
                if extra and (n >= 6 or not reads): e(extra.pop(0))
                if n in pos:
                    emit_items([vms[pos[n]]])
                if last and n >= 8 and n % 2 == 1:
                    h_out(0, (n-8)//2)
                n += 1
        assert not reads and not extra
    w = W2([0, 1, 2])
    wait_vm("st0")
    e("s_barrier")
    for r in read_list(0, 0): e(r)
    stamp(2)
    for s in range(10):
        pre = []; vms = []
        if s == 0:
            L, D = stage_x(2); pre += L; vms += D
            L, D = stage_w(2); vms += [(D[0][0], D[0][1], L)] + D[1:]
        elif s + 2 < 10:
            L, D = stage_w(s+2); pre += L; vms += D
        e("s_waitcnt lgkmcnt(0)")
        w.lgkm_done()
        if s >= E0 and w.nxt < NE and w.can_issue():
            vms += w.issue()
        mfmas(0, read_list(s, 1), [], pre, vms, first=(s == 0))
        dr = (s >= E0 + 2 and w.drained < w.nxt and w.drained <= s - 2 - E0)
        tags = [f"w{w.drained}"] if dr else []
        if s < 9:
            tags.append("poll" if s == 7 else f"st{s+1}")
        if tags: wait_vm(tags, " lgkmcnt(0)")
        else: e("s_waitcnt lgkmcnt(0)")
        e("s_barrier")
        pre = []; vms = []
        if s == 6:
            vmop("poll", f"buffer_load_dword v{VPR}, v{VZERO}, s[32:35], 0 offen sc1")
        if s == 7:
            e(f"v_cmp_eq_u32 vcc, 1, v{VPR}")
            e("s_cmp_eq_u64 vcc, -1")
            e("s_cselect_b32 s49, 0, 1")
        if s + 3 < 10:
            L, D = stage_x(s+3); pre += L; vms += D
        mfmas(1, read_list(s+1, 0) if s < 9 else [], w.drain() if dr else [], pre, vms, last=(s == 9))
        if s == 4: stamp(3)
    stamp(4)
    e("s_nop 7")
    for mt in range(4):
        h_out(1, mt)
    stamp(5)
    w.free = [3, 4, 5, 6, 7] + w.free
    first_b = w.nxt
    for _ in range(B1):
        if w.can_issue(): emit_items(w.issue())
    while w.drained < first_b:
        wait_vm(f"w{w.drained}")
        for l in w.drain(): e(l)
    wait_vm("hst", " lgkmcnt(0)")
    w.lgkm_done()
    e("s_cmp_eq_u32 s49, 0")
    e("s_cbranch_scc1 Lclr_ok")
    spin(VZERO, 32)
    lab("Lclr_ok")
    e("s_barrier")
    e("s_mov_b64 exec, 1")
    vmop("flag", f"buffer_store_dword v{VONE}, v{VZERO}, s[24:27], s44 offen sc1")
    e("s_mov_b64 exec, -1")
    stamp(6)
    for _ in range(PX):
        if w.drained < w.nxt:
            wait_vm(f"w{w.drained}")
            for l in w.drain(): e(l)
    vmop("poll2", f"buffer_load_dword v{VPR}, v{VPH}, s[24:27], 0 offen sc1")
    while w.can_issue(): emit_items(w.issue())
    wait_vm("poll2")
    stamp(7)
    e(f"v_cmp_eq_u32 vcc, 1, v{VPR}")
    e("s_mov_b32 s40, vcc_lo")
    main_loop(w)
    lab("Lidle")
    vm.clear()
    tile_map(True)
    p2_setup_w2()
    p2_setup_rest()
    e("s_waitcnt lgkmcnt(0)")
    srd(24, 14, WS_USED)
    srd(28, 10, O_BYTES)
    srd(32, 12, 256)
    srd(96, 8, W_BYTES)
    if STAMP:
        for i in range(32):
            e(f"s_mov_b32 s{64+i}, 0")
    stamp(0)
    e("s_cmp_lg_u32 s2, 255")
    e("s_cbranch_scc1 Lnoclear")
    for q in range(4):
        e(f"v_mov_b32 v{12+q}, 0")
    e("s_lshl_b32 s43, s36, 13")
    e(f"s_add_u32 s43, s43, {FLG}")
    for h in range(2):
        for q in range(4):
            e(f"buffer_store_dwordx4 v[12:15], v17, s[24:27], s43 offen offset:{1024*q} sc1")
        e("s_add_u32 s43, s43, 4096")
    e("s_waitcnt vmcnt(0)")
    e("s_barrier")
    e("s_cmp_eq_u32 s36, 0")
    e(f"s_cselect_b32 s43, 0, {OOB_A}")
    e("s_mov_b64 exec, 1")
    e(f"buffer_store_dword v{VONE}, v{VZERO}, s[32:35], s43 offen sc1")
    e("s_mov_b64 exec, -1")
    lab("Lnoclear")
    w = W2(range(8))
    while w.can_issue(): emit_items(w.issue())
    while w.drained < NS:
        wait_vm(f"w{w.drained}")
        for l in w.drain(): e(l)
        if w.nxt < NS:
            e("s_waitcnt lgkmcnt(0)")
            w.lgkm_done()
            while w.can_issue(): emit_items(w.issue())
    if PF2:
        e("s_add_u32 s58, s56, 2")
        e("s_and_b32 s58, s58, 7")
        e("s_sub_u32 s58, s58, s56")
        e("s_mul_i32 s58, s58, 160")
        e("s_add_u32 s45, s45, s58")
        for k in range(NS):
            for l in sigma_step(47, 45, 163840, 3): e(l)
            for q in range(5):
                d = 32 + 4*((5*k+q) % 20)
                e(f"buffer_load_dwordx4 v[{d}:{d+3}], v{VWD+q}, s[96:99], s51 offen offset:{1024*(q%4)}")
    stamp(6)
    spin(VZERO, 32)
    stamp(7)
    e("s_mov_b32 s40, 0")
    main_loop(w)
    out.extend(slow)
    lab("Lexit")
    e("s_endpgm")

kernel()
desc = f""".amdhsa_kernel {NAME}
  .amdhsa_next_free_vgpr 512
  .amdhsa_next_free_sgpr 102
  .amdhsa_accum_offset 256
  .amdhsa_group_segment_fixed_size 0
  .amdhsa_kernarg_size 48
  .amdhsa_user_sgpr_count 2
  .amdhsa_user_sgpr_kernarg_segment_ptr 1
  .amdhsa_system_sgpr_workgroup_id_x 1
.end_amdhsa_kernel
"""
txt = HEADER + f"; @launch grid=(256,1,1) block=(256,1,1) lds={LDS_BYTES}\n" \
    + '.amdgcn_target "amdgcn-amd-amdhsa--gfx950"\n.text\n' + "\n".join(out) + '\n.section .rodata,"a"\n.p2align 6\n' + desc
open(sys.argv[1], "w").write(txt)
```

```python
import sys
out = []
def e(s): out.append("    " + s)
def lab(s): out.append(s + ":")

HEADER = open('standalone__dense_activation_relu__prompt.s.ref').read().split('; Override')[0]
OPTS = sys.argv[2:]
def opt(name, d):
    for o in OPTS:
        if o.startswith(name + "="): return int(o.split("=")[1])
    return d
STAMP = "stamp" in OPTS
STEPS = "steps" in OPTS
RD2 = opt("rd2", 0)
PW = opt("pw", 0)
SP = opt("sp", 0)
SP2 = opt("sp2", 1)
PRE = opt("pre", 3)
BF = opt("bf", 0)
SLP = opt("slp", 0)
HQ = opt("hq", 3)
CH = opt("ch", 0)
S2E = opt("s2e", 0)
HO = opt("ho", 1)
PF = opt("pf", 0)
DIST5 = opt("dist", 4)
DIST6 = opt("dist6", 4)
NE = opt("ne", 4)
NAME = "standalone__dense_activation_relu__prompt_kernel"

X_BYTES = 2048*640*2
W_BYTES = 640*1728*2
O_BYTES = 2048*640*2
FLG = 8 << 20
WS_USED = FLG + 32768
OOB_A = 0x40000000
STG = 98304
LDS_BYTES = 163840

def lstamp(i):
    if STEPS: e(f"s_memtime s[{64+2*i}:{65+2*i}]")
def stamp(i):
    if not STAMP or STEPS: return
    assert i < 16
    e("s_memrealtime s[60:61]")
    e("s_memtime s[62:63]")
    e("s_waitcnt lgkmcnt(0)")
    e(f"s_mov_b32 s{64+2*i}, s60")
    e(f"s_mov_b32 s{65+2*i}, s62")
def stamp_flush():
    if not STAMP: return
    e("s_mov_b32 s26, 0x10000000")
    e("s_lshl_b32 s60, s2, 2")
    e("s_add_u32 s60, s60, s36")
    e("s_lshl_b32 s60, s60, 8")
    e(f"s_add_u32 s60, s60, {(256<<20) - (4<<20)}")
    e("v_mov_b32 v21, 0")
    for i in range(32):
        e(f"v_mov_b32 v20, s{64+i}")
        e(f"buffer_store_dword v20, v21, s[24:27], s60 offen offset:{4*i}")
        e("s_nop 1")

def srd(d, lo, nbytes):
    e(f"s_mov_b32 s{d}, s{lo}")
    e(f"s_and_b32 s{d+1}, s{lo+1}, 0xffff")
    e(f"s_mov_b32 s{d+2}, {nbytes}")
    e(f"s_mov_b32 s{d+3}, 0x00020000")

vm = []
def vmop(tag, text):
    vm.append(tag); e(text)
def vm_n(tag):
    idx = max(i for i, t in enumerate(vm) if t == tag)
    return len(vm) - 1 - idx
def wait_vm(tag, extra=""):
    n = vm_n(tag)
    assert n <= 63, n
    e(f"s_waitcnt vmcnt({n}){extra}")

ACC = 32; FR = 96
B2 = 160
HV = 166
VPH = 172; VPR = 173; VRW = 174; VRR = 177; VOUT = 178; VONE = 179; VZERO = 180; VWD = 181; VWR = 185
VWR2 = 252

def p2_setup(nt):
    if nt == 5:
        e("s_mul_i32 s57, s55, 5")
    else:
        e("s_mul_i32 s57, s55, 6")
        e("s_sub_u32 s57, s57, 22")
    e("s_mul_i32 s46, s57, 54")
    e("s_add_u32 s46, s46, s36")
    e("s_lshl_b32 s46, s46, 10")
    e("s_mul_i32 s45, s36, 40960")
    e("s_lshl_b32 s58, s56, 7")
    e("s_add_u32 s45, s45, s58")
    e("s_cmp_lt_u32 s36, 2")
    e(f"s_cselect_b32 s50, 0, {OOB_A}")
    e("s_cselect_b32 s3, 0, -163840")
    if CH:
        e("s_cmp_ge_u32 s56, 5")
        e("s_cselect_b32 s48, 5, 0")
        e("s_sub_u32 s48, s56, s48")
        e("s_mul_i32 s48, s48, 2868")
    else:
        e("s_mul_i32 s48, s56, 1435")
    e("s_lshr_b32 s48, s48, 10")
    e("s_mul_i32 s58, s55, 5")
    e("s_add_u32 s48, s48, s58")
    e("s_mul_i32 s58, s48, 4682")
    e("s_lshr_b32 s58, s58, 16")
    e("s_mul_i32 s58, s58, 14")
    e("s_sub_u32 s48, s48, s58")
    e("s_mov_b32 s47, s48")
    e("s_lshl_b32 s100, s36, 14")
    e(f"s_add_u32 s100, s100, {STG}")
    e("s_mul_i32 s53, s36, 24576")
    e("s_cmp_eq_u32 s36, 0")
    e(f"s_cselect_b32 s54, 0, {OOB_A}")
    e("v_lshlrev_b32 v17, 4, v2")
    e(f"v_mov_b32 v{HV}, v17")
    for t in range(1, nt):
        e(f"v_add_u32 v{HV+t}, {55296*t}, v17")
    e("v_lshrrev_b32 v12, 3, v2")
    e("v_mul_u32_u24 v12, 1280, v12")
    e("v_lshrrev_b32 v13, 4, v2")
    e("v_bfe_u32 v14, v2, 1, 2")
    e("v_xor_b32 v14, v14, v13")
    e("v_lshlrev_b32 v14, 1, v14")
    e("v_and_b32 v15, 1, v2")
    e("v_or_b32 v14, v14, v15")
    e("v_lshlrev_b32 v14, 4, v14")
    e(f"v_add_u32 v{VWD}, v12, v14")
    for rb in range(1, 4):
        e(f"v_add_u32 v{VWD+rb}, {rb*(10240-1024)}, v{VWD}")
    e("v_lshrrev_b32 v12, 2, v2")
    e("v_lshlrev_b32 v12, 7, v12")
    e("v_and_b32 v14, 3, v2")
    e("v_lshlrev_b32 v14, 3, v14")
    e("v_add_u32 v12, v12, v14")
    e("v_bfe_u32 v13, v2, 3, 2")
    for u in range(4):
        e(f"s_add_u32 s58, s36, {u}")
        e("s_and_b32 s58, s58, 3")
        e("v_xor_b32 v14, s58, v13")
        e("v_lshlrev_b32 v14, 5, v14")
        e("v_add_u32 v14, v12, v14")
        e(f"v_add_u32 v{VWR+u}, s100, v14")
        e(f"v_add_u32 v{VWR2+u}, s53, v14")
        if u > 0:
            e(f"s_mul_i32 s59, s58, {3*nt*1024}")
            e(f"s_add_u32 s59, s59, {(u-1)*nt*1024}")
            e(f"v_add_u32 v{VRW+u-1}, s59, v17")
    e(f"s_mul_i32 s59, s36, {3*nt*1024}")
    e(f"v_add_u32 v{VRR}, s59, v17")
    e("s_lshr_b32 s59, s57, 3")
    e(f"s_add_u32 s58, s57, {nt-1}")
    e("s_lshr_b32 s58, s58, 3")
    e("s_cmp_eq_u32 s58, s59")
    e("s_cselect_b32 s58, 13, 27")
    if BF:
        e("s_lshl_b32 s59, s59, 7")
        e(f"s_add_u32 s59, s59, {FLG}")
        e("v_min_u32 v12, s58, v2")
        e("v_cmp_lt_u32 vcc, 13, v12")
        e("v_lshlrev_b32 v12, 2, v12")
        e("v_cndmask_b32 v14, 0, 1, vcc")
        e("v_mul_u32_u24 v14, 72, v14")
        e("v_add_u32 v12, v12, v14")
        e(f"v_add_u32 v{VPH}, s59, v12")
    else:
        e("s_mul_i32 s59, s59, 14")
        e("v_min_u32 v12, s58, v2")
        e("v_add_u32 v12, s59, v12")
        e("v_lshlrev_b32 v12, 7, v12")
        e(f"v_add_u32 v{VPH}, {FLG}, v12")
    e("s_lshl_b32 s59, s57, 4")
    e(f"v_and_b32 v{VOUT}, 15, v2")
    e(f"v_add_u32 v{VOUT}, s59, v{VOUT}")
    e(f"v_mul_u32_u24 v{VOUT}, 1280, v{VOUT}")
    e("v_lshrrev_b32 v11, 4, v2")
    e("v_lshlrev_b32 v11, 3, v11")
    e(f"v_add_u32 v{VOUT}, v{VOUT}, v11")
    e("s_lshl_b32 s59, s56, 7")
    e("s_lshl_b32 s58, s36, 5")
    e("s_add_u32 s59, s59, s58")
    e(f"v_add_u32 v{VOUT}, s59, v{VOUT}")
    e(f"v_mov_b32 v{VONE}, 1")
    e(f"v_mov_b32 v{VZERO}, 0")

def sigma_step(base, stride, adj):
    L = []
    L.append(f"s_mul_i32 s51, s47, {stride}")
    L.append(f"s_add_u32 s51, s51, s{base}")
    L.append("s_cmp_eq_u32 s47, 13")
    L.append(f"s_cselect_b32 s52, s{adj}, 0")
    L.append("s_add_u32 s51, s51, s52")
    L.append("s_add_u32 s47, s47, 1")
    L.append("s_cmp_eq_u32 s47, 14")
    L.append("s_cselect_b32 s47, 0, s47")
    return L

def slot_of(j):
    k = j if j < 10 else j - 10
    return (0, k*4096) if k < 4 else (1, (k-4)*4096)
def w2_items(j):
    it = []
    b, o = slot_of(j)
    for rb in range(4):
        pre = [f"s_add_u32 m0, s{100 if b == 0 else 53}, {o}"] + sigma_step(45, 163840, 3) if rb == 0 else []
        it.append((f"w{j}", f"buffer_load_dwordx4 v{VWD+rb}, s[96:99], s51 offen offset:{1024*rb} lds", pre))
    return it
def emit_items(items):
    for tg, tx, pre in items:
        for l in pre: e(l)
        vmop(tg, tx)
def w2_reads(j):
    b, o = slot_of(j)
    base = VWR if b == 0 else VWR2
    for u in range(4):
        a = 16*j + 4*u
        e(f"ds_read_b64_tr_b16 a[{a}:{a+1}], v{base+u} offset:{o}")
        e(f"ds_read_b64_tr_b16 a[{a+2}:{a+3}], v{base+u} offset:{o+2048}")

spin_id = [0]
def flag_load(soff="0"):
    if BF: return f"buffer_load_dword v{VPR}, v{VPH}, s[24:27], {soff} offen sc1"
    return f"buffer_load_dwordx4 v[28:31], v{VPH}, s[24:27], {soff} offen sc1"
def spin(vaddr, srdlo, val, slp=1, first=False):
    k = spin_id[0]; spin_id[0] += 1
    e("s_mov_b32 s59, 0x40000")
    if first: e(f"s_branch Lspinc{k}")
    lab(f"Lspin{k}")
    fl = vaddr == VPH
    e(flag_load() if fl else f"buffer_load_dword v{VPR}, v{vaddr}, s[{srdlo}:{srdlo+3}], 0 offen sc1")
    e("s_waitcnt vmcnt(0)")
    lab(f"Lspinc{k}")
    if fl and not BF:
        val = 1
        e(f"v_and_b32 v{VPR}, v28, v29")
        e(f"v_and_b32 v{VPR}, v{VPR}, v30")
        e(f"v_and_b32 v{VPR}, v{VPR}, v31")
    e(f"v_cmp_eq_u32 vcc, {val}, v{VPR}")
    e("s_cmp_eq_u64 vcc, -1")
    e(f"s_cbranch_scc1 Lspun{k}")
    if slp: e(f"s_sleep {slp}")
    e("s_sub_u32 s59, s59, 1")
    e("s_cmp_lg_u32 s59, 0")
    e(f"s_cbranch_scc1 Lspin{k}")
    lab(f"Lspun{k}")

def publish(sfx):
    e("s_cmp_eq_u32 s49, 0")
    e(f"s_cbranch_scc1 Lclr_ok{sfx}")
    spin(VZERO, 32, 1)
    lab(f"Lclr_ok{sfx}")
    e("s_mov_b64 exec, 1")
    vmop("flag", f"buffer_store_{'byte' if BF else 'dword'} v{VONE}, v{VZERO}, s[24:27], s44 offen sc1")
    e("s_mov_b64 exec, -1")

def phase2(nt, gemm1):
    NS = 14
    if nt == 5:
        HR = [("v", 112), ("v", 132), ("v", 192), ("v", 212), ("v", 232), ("a", 224), ("v", 4)]
        DIST = DIST5
    else:
        HR = [("v", 128), ("v", 192), ("v", 216), ("a", 224), ("v", 4)]
        DIST = DIST6
    HR = HR[:DIST+1]
    assert len(HR) == DIST + 1
    def hreg(j, t):
        k, r = HR[j % len(HR)]
        return f"{k}[{r+4*t}:{r+4*t+3}]"
    def h_items(j):
        it = []
        for t in range(nt):
            pre = sigma_step(46, 4096, 50) if t == 0 else []
            it.append((f"h{j}", f"buffer_load_dwordx4 {hreg(j, t)}, v{HV+t}, s[24:27], s51 offen sc1", pre))
        return it
    sfx = f"_{nt}"
    if gemm1:
        assert NE == 4
        for j in range(4, 4+PRE):
            emit_items(w2_items(j))
        stamp(14)
        for j in range(4):
            wait_vm(f"w{j}")
            w2_reads(j)
        wait_vm("hst")
        stamp(15)
        publish("a")
        stamp(6)
        for j in range(4+PRE, 10):
            emit_items(w2_items(j))
    else:
        for j in range(10):
            emit_items(w2_items(j))
        for j in range(4):
            wait_vm(f"w{j}")
            w2_reads(j)
    for j in range(10, 14):
        e(f"s_waitcnt lgkmcnt({8*(13-j) if 8*(13-j) < 16 else 15})" if j < 13 else "s_waitcnt lgkmcnt(0)")
        emit_items(w2_items(j))
    late = (not gemm1) and (not PF)
    if not late:
        vmop("poll2", flag_load("s54"))
    for j in range(4, NS):
        wait_vm(f"w{j}")
        w2_reads(j)
        if j == 9: stamp(1)
    stamp(3 if gemm1 else 6)
    e("s_cmp_lg_u32 s36, 0")
    e(f"s_cbranch_scc1 Lgo{sfx}")
    if late:
        spin(VZERO, 32, 1)
        spin(VPH, 24, "0x01010101", 1)
    else:
        wait_vm("poll2")
        if gemm1: stamp(7)
        spin(VPH, 24, "0x01010101", SLP if gemm1 else 1, first=True)
    lab(f"Lgo{sfx}")
    e("s_barrier")
    stamp(8)
    e("s_mov_b32 s47, s48")
    for jj in range(DIST):
        emit_items(h_items(jj))
    e("s_waitcnt lgkmcnt(0)")
    for j in range(NS):
        wait_vm(f"h{j}")
        if j in (0, 7): stamp(9 + j//7)
        items = h_items(j+DIST) if j + DIST < NS else []
        order = [(u, t) for u in ((0, 1, 2, 3) if j < NS-1 else (1, 2, 3, 0)) for t in range(nt)]
        n = 0; pend = []
        for u, t in order:
            acc = ACC + (u*nt+t)*4
            c = "0" if j == 0 else f"v[{acc}:{acc+3}]"
            e(f"v_mfma_f32_16x16x32_bf16 v[{acc}:{acc+3}], a[{16*j+4*u}:{16*j+4*u+3}], {hreg(j, t)}, {c}")
            if SP2:
                if items and n < 4:
                    for l in items[0][2][2*n:2*n+2]: e(l)
                if items and n >= 4 and (n - 4) % 3 == 0:
                    tg, tx, _ = items.pop(0)
                    vmop(tg, tx)
            elif n % 4 == 1 and items:
                emit_items([items.pop(0)])
            if j == NS-1:
                if u != 0: pend.append((u, t))
                if n >= nt and pend:
                    pu, pt = pend.pop(0)
                    pa = ACC + (pu*nt+pt)*4
                    e(f"ds_write_b128 v{VRW+pu-1}, v[{pa}:{pa+3}] offset:{pt*1024}")
            n += 1
        assert not items
    assert not pend
    stamp(11)
    e("s_waitcnt lgkmcnt(0)")
    e("s_barrier")
    groups = [128+4*k for k in range(8)] + [192+4*k for k in range(15)]
    for t in range(nt):
        for q in range(3):
            d = groups[t*3+q]
            e(f"ds_read_b128 v[{d}:{d+3}], v{VRR} offset:{(q*nt+t)*1024}")
    AF = ACC + nt*4
    for t in range(nt):
        e(f"s_waitcnt lgkmcnt({min(15, 3*(nt-1-t))})")
        a = ACC + t*4; d0, d1, d2 = groups[t*3:t*3+3]
        for hh in range(2):
            e(f"v_pk_add_f32 v[{d0+2*hh}:{d0+2*hh+1}], v[{d0+2*hh}:{d0+2*hh+1}], v[{d1+2*hh}:{d1+2*hh+1}]")
            e(f"v_pk_add_f32 v[{a+2*hh}:{a+2*hh+1}], v[{a+2*hh}:{a+2*hh+1}], v[{d2+2*hh}:{d2+2*hh+1}]")
        for hh in range(2):
            e(f"v_pk_add_f32 v[{a+2*hh}:{a+2*hh+1}], v[{a+2*hh}:{a+2*hh+1}], v[{d0+2*hh}:{d0+2*hh+1}]")
        e(f"v_cvt_pk_bf16_f32 v{AF+2*t}, v{a}, v{a+1}")
        e(f"v_cvt_pk_bf16_f32 v{AF+2*t+1}, v{a+2}, v{a+3}")
        e(f"s_mov_b32 s51, {20480*t}")
        e(f"buffer_store_dwordx2 v[{AF+2*t}:{AF+2*t+1}], v{VOUT}, s[28:31], s51 offen")
    stamp(12)
    if STAMP:
        e("s_waitcnt vmcnt(0)")
        stamp(13)
        stamp_flush()
    e("s_endpgm")

def kernel():
    out.append(f".globl {NAME}\n.p2align 8\n.type {NAME},@function\n{NAME}:")
    e("s_cmp_ge_u32 s2, 256")
    e("s_cbranch_scc1 Lexit")
    e("s_load_dwordx8 s[4:11], s[0:1], 0")
    e("s_load_dwordx4 s[12:15], s[0:1], 32")
    e("v_lshrrev_b32 v1, 6, v0")
    e("v_and_b32 v2, 63, v0")
    e("s_nop 0")
    e("v_readfirstlane_b32 s36, v1")
    if STAMP:
        for i in range(2*16):
            e(f"s_mov_b32 s{64+i}, 0")
    e("s_and_b32 s53, s2, 7")
    e("s_lshr_b32 s54, s2, 3")
    e("s_cmp_ge_u32 s54, 28")
    e("s_cbranch_scc1 Lidle")
    e("s_mul_i32 s55, s54, 37")
    e("s_lshr_b32 s55, s55, 8")
    e("s_mul_i32 s56, s55, 7")
    e("s_sub_u32 s56, s54, s56")
    e("s_mul_i32 s39, s56, 3")
    e("s_mul_i32 s57, s55, 5")
    e("s_lshr_b32 s57, s57, 1")
    e("s_add_u32 s39, s39, s57")
    for _ in range(2):
        e("s_cmp_ge_u32 s39, 10")
        e("s_cselect_b32 s57, 10, 0")
        e("s_sub_u32 s39, s39, s57")
    e("s_lshr_b32 s57, s53, 1")
    e("s_lshl_b32 s57, s57, 2")
    e("s_add_u32 s55, s55, s57")
    e("s_and_b32 s57, s53, 1")
    e("s_mul_i32 s57, s57, 7")
    e("s_add_u32 s56, s56, s57")
    e("s_lshl_b32 s57, s56, 7")
    e("s_min_u32 s57, s57, 1600")
    e("v_lshrrev_b32 v12, 3, v2")
    e("v_mul_u32_u24 v12, 1280, v12")
    e("v_lshrrev_b32 v13, 4, v2")
    e("v_and_b32 v14, 7, v2")
    e("v_xor_b32 v14, v14, v13")
    for i in range(4):
        e(f"v_xor_b32 v15, {4*(i&1)}, v14")
        e("v_lshlrev_b32 v15, 4, v15")
        e("v_add_u32 v15, v15, v12")
        e(f"v_add_u32 v{3+i}, {i*(10240-1024)}, v15")
    e("v_mul_u32_u24 v12, 3456, v13")
    e("v_and_b32 v14, 15, v2")
    e("v_lshrrev_b32 v14, 1, v14")
    e("v_xor_b32 v14, v14, v13")
    e("v_and_b32 v16, 1, v2")
    for i in range(4):
        e(f"v_xor_b32 v15, {4*(i>>1)}, v14")
        e("v_lshlrev_b32 v15, 1, v15")
        e("v_or_b32 v15, v15, v16")
        e("v_lshlrev_b32 v15, 4, v15")
        e("v_add_u32 v15, v15, v12")
        e(f"v_add_u32 v{7+i}, {i*(13824-1024)}, v15")
    e("s_lshl_b32 s37, s55, 2")
    e("s_add_u32 s37, s37, s36")
    e("s_mul_i32 s37, s37, 40960")
    e("s_mul_i32 s38, s36, 55296")
    e("s_lshl_b32 s42, s57, 1")
    e("s_add_u32 s38, s38, s42")
    e("s_lshl_b32 s42, s36, 12")
    e("s_waitcnt lgkmcnt(0)")
    srd(16, 4, X_BYTES)
    srd(20, 6, W_BYTES)
    stamp(0)
    lstamp(0)
    def stage_x(st):
        slot = st % 3
        L = ["s_lshl_b32 s40, s39, 7", "s_add_u32 s40, s40, s37", f"s_add_u32 m0, s42, {slot*32768}", "s_mul_i32 s41, s39, 221184"]
        D = [(f"st{st}", f"buffer_load_dwordx4 v{3+i}, s[16:19], s40 offen offset:{1024*i} lds") for i in range(4)]
        return L, D
    def stage_w(st):
        slot = st % 3
        L = ["s_add_u32 s41, s41, s38", f"s_add_u32 m0, s42, {slot*32768+16384}", "s_add_u32 s39, s39, 1", "s_cmp_eq_u32 s39, 10", "s_cselect_b32 s39, 0, s39"]
        D = [(f"st{st}", f"buffer_load_dwordx4 v{7+i}, s[20:23], s41 offen offset:{1024*i} lds") for i in range(4)]
        return L, D
    for st in range(2):
        for fn in (stage_x, stage_w):
            L, D = fn(st)
            for l in L: e(l)
            for t, d in D: vmop(t, d)
    srd(24, 14, WS_USED)
    srd(28, 10, O_BYTES)
    srd(32, 12, 256)
    srd(96, 8, W_BYTES)
    e("s_lshr_b32 s58, s36, 1")
    e("s_and_b32 s59, s36, 1")
    e("v_and_b32 v12, 15, v2")
    e("v_lshrrev_b32 v14, 1, v12")
    e("v_xor_b32 v14, v14, v13")
    e("v_lshlrev_b32 v14, 4, v14")
    e("v_lshlrev_b32 v12, 7, v12")
    e("v_add_u32 v12, v12, v14")
    e("s_lshl_b32 s51, s58, 13")
    e("v_add_u32 v22, s51, v12")
    e("v_xor_b32 v23, 64, v22")
    e("v_bfe_u32 v12, v2, 2, 2")
    e("v_lshlrev_b32 v14, 3, v13")
    e("v_add_u32 v14, v14, v12")
    e("v_lshlrev_b32 v14, 8, v14")
    e("v_and_b32 v15, 1, v13")
    e("v_lshlrev_b32 v15, 2, v15")
    e("v_or_b32 v15, v15, v12")
    e("v_and_b32 v16, 3, v2")
    e("v_lshlrev_b32 v16, 3, v16")
    e("v_add_u32 v14, v14, v16")
    e("v_add_u32 v14, 16384, v14")
    e("s_lshl_b32 s51, s59, 2")
    for nt in range(4):
        e(f"s_add_u32 s52, s51, {nt}")
        e("v_xor_b32 v16, s52, v15")
        e("v_lshlrev_b32 v16, 5, v16")
        e(f"v_add_u32 v{24+nt}, v14, v16")
    for i in range(6):
        e(f"v_add_u32 v{B2+i}, 0x10000, v{22+i}")
    e("s_lshl_b32 s51, s55, 3")
    e("s_lshl_b32 s52, s58, 2")
    e("s_add_u32 s51, s51, s52")
    e("s_mul_i32 s51, s51, 55296")
    e("s_lshr_b32 s52, s57, 5")
    e("s_lshl_b32 s43, s59, 1")
    e("s_add_u32 s52, s52, s43")
    e("s_lshl_b32 s52, s52, 10")
    e("s_add_u32 s51, s51, s52")
    e("v_lshlrev_b32 v18, 4, v2")
    e("v_add_u32 v18, s51, v18")
    e("s_lshl_b32 s51, s56, 1")
    e("s_add_u32 s51, s51, s59")
    e("s_cmp_eq_u32 s51, 26")
    e(f"s_cselect_b32 s43, {OOB_A}, 0")
    if BF:
        e("s_lshl_b32 s52, s55, 5")
        e("s_add_u32 s52, s52, s56")
        e("s_lshl_b32 s52, s52, 2")
        e("s_add_u32 s52, s52, s36")
    else:
        e("s_mul_i32 s52, s55, 14")
        e("s_add_u32 s52, s52, s56")
        e("s_lshl_b32 s52, s52, 5")
        e("s_add_u32 s52, s52, s36")
        e("s_lshl_b32 s52, s52, 2")
    e(f"s_add_u32 s44, s52, {FLG}")
    if CH:
        e("s_lshr_b32 s51, s53, 1")
        e("s_mul_i32 s51, s51, 55")
        e("s_add_u32 s52, s51, 55")
        e("s_lshr_b32 s51, s51, 1")
        e("s_lshr_b32 s52, s52, 1")
        e("s_add_u32 s51, s51, s54")
        e("s_cmp_lt_u32 s51, s52")
        e("s_cselect_b32 s101, 1, 0")
        e("s_min_u32 s51, s51, 109")
        e("s_mul_i32 s55, s51, 205")
        e("s_lshr_b32 s55, s55, 10")
        e("s_mul_i32 s56, s55, 5")
        e("s_sub_u32 s56, s51, s56")
        e("s_and_b32 s52, s53, 1")
        e("s_mul_i32 s52, s52, 5")
        e("s_add_u32 s56, s56, s52")
    else:
        e("s_mul_i32 s51, s53, 55")
        e("s_add_u32 s52, s51, 55")
        e("s_lshr_b32 s51, s51, 1")
        e("s_lshr_b32 s52, s52, 1")
        e("s_add_u32 s51, s51, s54")
        e("s_cmp_lt_u32 s51, s52")
        e("s_cselect_b32 s101, 1, 0")
        e("s_min_u32 s51, s51, 219")
        e("s_mul_i32 s55, s51, 205")
        e("s_lshr_b32 s55, s55, 11")
        e("s_mul_i32 s56, s55, 10")
        e("s_sub_u32 s56, s51, s56")
    p2_setup(5)
    def rbase(st, i):
        slot = st % 3
        return (f"v{22+i}", slot*32768) if slot < 2 else (f"v{B2+i}", 0)
    def read_list(st, u):
        f = FR + 32*u
        def xr(t):
            r, o = rbase(st, u)
            return f"ds_read_b128 v[{f+4*t}:{f+4*t+3}], {r} offset:{o+2048*t}"
        def wr(t):
            r, o = rbase(st, 2+t)
            return [f"ds_read_b64_tr_b16 v[{f+16+4*t}:{f+16+4*t+1}], {r} offset:{o+8192*u}",
                    f"ds_read_b64_tr_b16 v[{f+16+4*t+2}:{f+16+4*t+3}], {r} offset:{o+8192*u+1024}"]
        if PW:
            return wr(0) + [xr(0), xr(1), xr(2), xr(3)] + wr(1) + wr(2) + wr(3)
        L = []
        for t in range(4):
            L += wr(t) + [xr(t)]
        return L
    def h_out_list(p, mt):
        d = FR + (p*4+mt)*4
        L = []
        for hh in range(2):
            acc = ACC + ((2*p+hh)*4+mt)*4
            L.append(f"v_cvt_pk_bf16_f32 v{d+2*hh}, v{acc}, v{acc+1}")
            L.append(f"v_cvt_pk_bf16_f32 v{d+2*hh+1}, v{acc+2}, v{acc+3}")
        for q in range(4):
            L.append(f"v_pk_max_i16 v{d+q}, v{d+q}, 0")
        L.append(f"s_add_u32 s51, s43, {mt*55296}")
        L.append(("hst", f"buffer_store_dwordx4 v[{d}:{d+3}], v18, s[24:27], s51 offen offset:{1024*p} sc1"))
        return L
    def emit(x):
        if isinstance(x, tuple): vmop(x[0], x[1])
        else: e(x)
    need = {0: 5, 4: 7, 8: 9, 12: 11}
    tailq = []
    def mfmas(u, reads, groups, first=False, last=False, partial=False, bar2=False, extra=[]):
        f = FR + 32*u
        gap = [[] for _ in range(16)]
        nd = sum(len(g[1]) for g in groups)
        if SP:
            g0 = 16 - nd
            allq = list(extra) + (list(groups[0][0]) if groups else [])
            per = -(-len(allq) // g0)
            i = 0
            while allq:
                for _ in range(per):
                    if allq: gap[i].append(allq.pop(0))
                i += 1
            for gi, (pre, dm) in enumerate(groups):
                if gi > 0: gap[g0-1] += list(pre)
                for d_ in dm:
                    gap[g0].append(d_); g0 += 1
        else:
            for x in extra: emit(x)
            flat = []
            for gi, (pre, dm) in enumerate(groups):
                if gi == 0:
                    for l in pre: e(l)
                    flat += [[d_] for d_ in dm]
                else:
                    flat += [list(pre) + [dm[0]]] + [[d_] for d_ in dm[1:]]
            for j in range(len(flat)):
                gap[(16*j)//len(flat) + 1] += flat[j]
        order = [(nt, mt) for nt in range(4) for mt in range(4)]
        if last:
            order = [(2*p+hh, mt) for p in range(2) for mt in range(4) for hh in range(2)]
            hq = []
            for k in range(8):
                hq += [(2*k+1+3, x) for x in h_out_list(k//4, k%4)]
        k = 0
        for n, (nt, mt) in enumerate(order):
            acc = ACC + (nt*4+mt)*4
            c = "0" if first else f"v[{acc}:{acc+3}]"
            if partial and n in need:
                e(f"s_waitcnt lgkmcnt({11 - need[n] + k})")
                if n == 12 and bar2: e("s_barrier")
            e(f"v_mfma_f32_16x16x32_bf16 v[{acc}:{acc+3}], v[{f+16+4*nt}:{f+16+4*nt+3}], v[{f+4*mt}:{f+4*mt+3}], {c}")
            if k < len(reads):
                e(reads[k]); k += 1
            for x in gap[n]: emit(x)
            if last:
                for _ in range(HQ):
                    if hq and hq[0][0] <= n: emit(hq.pop(0)[1])
        if last:
            tailq.extend(x for _, x in hq)
    def w2_group(j):
        it = w2_items(j)
        return (it[0][2], [(t, d) for t, d, _ in it])
    if S2E:
        for fn in (stage_x, stage_w):
            L, D = fn(2)
            for l in L: e(l)
            for t, d in D: vmop(t, d)
    wait_vm("st0")
    e("s_barrier")
    lstamp(1)
    for r in read_list(0, 0): e(r)
    stamp(2)
    places = [(7, 1), (8, 0), (8, 1), (9, 0)] if HO else [(8, 0), (8, 1), (9, 0), (9, 1)]
    early = {places[4-NE+j]: j for j in range(NE)}
    for s in range(10):
        groups = []
        if s == 0:
            if not S2E: groups += [stage_x(2), stage_w(2)]
        elif s + 2 < 10:
            groups += [stage_w(s+2)]
        if (s, 0) in early:
            groups.append(w2_group(early[(s, 0)]))
        if not PW: e("s_waitcnt lgkmcnt(0)")
        mfmas(0, read_list(s, 1), groups, first=(s == 0), partial=(PW >= 1))
        p2 = PW == 2 and s < 9
        if s < 9:
            tag = "poll" if s == 7 else f"st{s+1}"
            wait_vm(tag, "" if p2 else " lgkmcnt(0)")
            e("s_barrier")
        else:
            e("s_waitcnt lgkmcnt(0)")
            e("s_barrier")
        lstamp(2+s)
        groups = []; extra = []
        if s == 6:
            extra.append(("poll", f"buffer_load_dword v{VPR}, v{VZERO}, s[32:35], 0 offen sc1"))
        if s == 7:
            extra += [f"v_cmp_eq_u32 vcc, 1, v{VPR}", "s_nop 0", "s_cmp_eq_u64 vcc, -1", "s_cselect_b32 s49, 0, 1"]
        if s + 3 < 10:
            groups.append(stage_x(s+3))
        if (s, 1) in early:
            groups.append(w2_group(early[(s, 1)]))
        mfmas(1, read_list(s+1, 0) if s < 9 else [], groups, last=(s == 9 and HO), partial=p2, bar2=(p2 and s + 3 < 10), extra=extra)
    stamp(4)
    lstamp(12)
    e("s_nop 7")
    if HO:
        for x in tailq: emit(x)
    else:
        for p in range(2):
            for mt in range(4):
                for x in h_out_list(p, mt): emit(x)
    stamp(5)
    lstamp(13)
    e("s_cmp_lg_u32 s101, 0")
    e("s_cbranch_scc1 Lp2")
    e("s_waitcnt vmcnt(0)")
    sv = list(vm)
    publish("b")
    e("s_endpgm")
    vm[:] = sv
    lab("Lp2")
    phase2(5, True)
    lab("Lidle")
    vm.clear()
    e("s_sub_u32 s37, s54, 28")
    e("s_lshl_b32 s55, s37, 3")
    e("s_add_u32 s38, s55, s53")
    e("s_waitcnt lgkmcnt(0)")
    srd(24, 14, WS_USED)
    srd(28, 10, O_BYTES)
    srd(32, 12, 256)
    srd(96, 8, W_BYTES)
    stamp(0)
    if CH:
        e("s_lshr_b32 s51, s53, 1")
        e("s_lshl_b32 s51, s51, 2")
        e("s_add_u32 s51, s51, s37")
        e("s_min_u32 s51, s51, 14")
        e("s_mul_i32 s55, s51, 205")
        e("s_lshr_b32 s55, s55, 10")
        e("s_mul_i32 s56, s55, 5")
        e("s_sub_u32 s56, s51, s56")
        e("s_and_b32 s52, s53, 1")
        e("s_mul_i32 s52, s52, 5")
        e("s_add_u32 s56, s56, s52")
    else:
        e("s_min_u32 s51, s38, 29")
        e("s_mul_i32 s55, s51, 205")
        e("s_lshr_b32 s55, s55, 11")
        e("s_mul_i32 s56, s55, 10")
        e("s_sub_u32 s56, s51, s56")
    e("s_add_u32 s55, s55, 22")
    e("s_lshl_b32 s39, s38, 2")
    e("s_add_u32 s39, s39, s36")
    e("s_cmp_lg_u32 s39, 124")
    e("s_cbranch_scc1 Lnoclr")
    for q in range(4):
        e(f"v_mov_b32 v{32+q}, 0")
    e("v_lshlrev_b32 v8, 4, v2")
    e(f"s_mov_b32 s43, {FLG}")
    for q in range(2 if BF else 28):
        e(f"buffer_store_dwordx4 v[32:35], v8, s[24:27], s43 offen offset:{1024*(q%4)} sc1")
        if q % 4 == 3: e("s_add_u32 s43, s43, 4096")
    e("s_waitcnt vmcnt(0)")
    e("v_mov_b32 v12, 1")
    e("s_mov_b64 exec, 1")
    e("buffer_store_dword v12, v32, s[32:35], 0 offen sc1")
    e("s_mov_b64 exec, -1")
    lab("Lnoclr")
    p2_setup(6)
    if PF:
        spin(VZERO, 32, 1)
        stamp(7)
        e("s_lshl_b32 s39, s37, 2")
        e("s_add_u32 s39, s39, s36")
        e("s_mul_i32 s39, s39, 138240")
        e("v_lshlrev_b32 v8, 7, v2")
        for k in range(17 if PF == 1 else 0):
            vmop("pf", f"buffer_load_dword v{32+k}, v8, s[96:99], s39 offen")
            e("s_add_u32 s39, s39, 8192")
        e("s_cmp_lt_u32 s38, 30")
        e("s_cbranch_scc1 Lheavy")
        e("s_waitcnt vmcnt(0)")
        e("s_endpgm")
        lab("Lheavy")
    else:
        e("s_cmp_ge_u32 s38, 30")
        e("s_cbranch_scc1 Lexit")
    phase2(6, False)
    lab("Lexit")
    e("s_endpgm")

kernel()
desc = f""".amdhsa_kernel {NAME}
  .amdhsa_next_free_vgpr 512
  .amdhsa_next_free_sgpr 102
  .amdhsa_accum_offset 256
  .amdhsa_group_segment_fixed_size 0
  .amdhsa_kernarg_size 48
  .amdhsa_user_sgpr_count 2
  .amdhsa_user_sgpr_kernarg_segment_ptr 1
  .amdhsa_system_sgpr_workgroup_id_x 1
.end_amdhsa_kernel
"""
txt = HEADER + f"; @launch grid=(256,1,1) block=(256,1,1) lds={LDS_BYTES}\n" \
    + '.amdgcn_target "amdgcn-amd-amdhsa--gfx950"\n.text\n' + "\n".join(out) + '\n.section .rodata,"a"\n.p2align 6\n' + desc
open(sys.argv[1], "w").write(txt)
```
